```python
import torch

def _softmax(x, axis=-1):
    return torch.softmax(x, dim=axis)
def _gelu(x):
    return torch.nn.functional.gelu(x, approximate="tanh")
def _silu(x):
    return torch.nn.functional.silu(x)
def _sigmoid(x):
    return torch.sigmoid(x)
def _layernorm(x, axis=-1, eps=1e-5):
    m = x.mean(dim=axis, keepdim=True)
    v = x.var(dim=axis, keepdim=True, unbiased=False)
    return (x - m) / torch.sqrt(v + eps)
def _scatter_add(tgt, idx, src, axis=0):
    return tgt.clone().index_add_(axis, idx, src)
def _segment_sum(src, seg, n):
    out = torch.zeros((n,) + src.shape[1:], dtype=src.dtype)
    return out.index_add_(0, seg, src)
def _pad(x, pw):
    flat = tuple(v for pair in reversed(pw) for v in pair)
    return torch.nn.functional.pad(x, flat)

kernel_name = 'sequential_preLN__spectral_fnet__swiglu_ffn__prompt'

def setup_inputs():

    _w = (lambda a: (lambda t: t.to(torch.bfloat16) if t.is_floating_point() else t)(torch.as_tensor(a)))
    def _A_setup():
        B, S, D = 1, 2048, 512
        ns = torch.arange(S)[:, None] * torch.arange(S)[None, :]
        nd = torch.arange(D)[:, None] * torch.arange(D)[None, :]
        Ws_re = torch.cos(-2.0 * torch.pi * ns / S).to(float)
        Ws_im = torch.sin(-2.0 * torch.pi * ns / S).to(float)
        Wd_re = torch.cos(-2.0 * torch.pi * nd / D).to(float)
        Wd_im = torch.sin(-2.0 * torch.pi * nd / D).to(float)
        return {
            "x": _w((lambda *s: torch.randn(*s, dtype=torch.bfloat16) * 0.05)(B, S, D)),
            "dft_seq_re": _w(Ws_re),
            "dft_seq_im": _w(Ws_im),
            "dft_hid_re": _w(Wd_re),
            "dft_hid_im": _w(Wd_im),
        }
    _A_in = _A_setup()

    def _B_setup():
        B, S, D, F = 1, 2048, 512, 1376
        return {
            "x": _w((lambda *s: torch.randn(*s, dtype=torch.bfloat16) * 0.05)(B, S, D)),
            "w_gate": _w((lambda *s: torch.randn(*s, dtype=torch.bfloat16) * 0.2)(D, F)),
            "w_up": _w((lambda *s: torch.randn(*s, dtype=torch.bfloat16) * 0.2)(D, F)),
            "w_down": _w((lambda *s: torch.randn(*s, dtype=torch.bfloat16) * 0.2)(F, D)),
        }
    _B_in = _B_setup()

    return {
        "A_x": _A_in["x"],
        "A_dft_seq_re": _A_in["dft_seq_re"],
        "A_dft_seq_im": _A_in["dft_seq_im"],
        "A_dft_hid_re": _A_in["dft_hid_re"],
        "A_dft_hid_im": _A_in["dft_hid_im"],
        "B_x": _B_in["x"],
        "B_w_gate": _B_in["w_gate"],
        "B_w_up": _B_in["w_up"],
        "B_w_down": _B_in["w_down"],
    }

def reference(A_x, A_dft_seq_re, A_dft_seq_im, A_dft_hid_re, A_dft_hid_im, B_x, B_w_gate, B_w_up, B_w_down):
    def _A_ref(x, dft_seq_re, dft_seq_im, dft_hid_re, dft_hid_im):
        a = torch.einsum("bsd,ed->bse", x, dft_hid_re)
        b = torch.einsum("bsd,ed->bse", x, dft_hid_im)
        y = torch.einsum("ts,bse->bte", dft_seq_re, a) - torch.einsum("ts,bse->bte", dft_seq_im, b)
        return y

    def _B_ref(x, w_gate, w_up, w_down):
        g = _silu(x @ w_gate)
        u = x @ w_up
        return (g * u) @ w_down

    x = A_x
    h = x + _A_ref(_layernorm(x, axis=-1), A_dft_seq_re, A_dft_seq_im, A_dft_hid_re, A_dft_hid_im)
    h2 = h + _B_ref(_layernorm(h, axis=-1), B_w_gate, B_w_up, B_w_down)
    return h2
```

```python
NAME = "sequential_preLN__spectral_fnet__swiglu_ffn__prompt"
HDR = """; generated
"""
def kernel_begin(name):
    return f""".text
.globl {name}
.p2align 8
.type {name},@function
{name}:
"""
def kernel_desc(name, vgpr=256, sgpr=102, accum=None):
    if accum is None:
        accum = min(256, (vgpr + 3) // 4 * 4)
    return f""".section .rodata,"a"
.p2align 6
.amdhsa_kernel {name}
  .amdhsa_next_free_vgpr {vgpr}
  .amdhsa_next_free_sgpr {sgpr}
  .amdhsa_accum_offset {accum}
  .amdhsa_group_segment_fixed_size 0
  .amdhsa_kernarg_size 96
  .amdhsa_user_sgpr_count 2
  .amdhsa_user_sgpr_kernarg_segment_ptr 1
  .amdhsa_system_sgpr_workgroup_id_x 1
.end_amdhsa_kernel
"""
TARGET = '.amdgcn_target "amdgcn-amd-amdhsa--gfx950"\n'
```

```python
import re
TRANS = ("v_exp_f32","v_log_f32","v_rcp_f32","v_rsq_f32","v_sqrt_f32","v_sin_f32","v_cos_f32")
def regs_of(tok):
    tok = tok.strip()
    tok = re.sub(r"^-|^abs\(|\)$", "", tok)
    m = re.fullmatch(r"([vas])(\d+)", tok)
    if m: return [(m.group(1), int(m.group(2)))]
    m = re.fullmatch(r"([vas])\[(\d+):(\d+)\]", tok)
    if m: return [(m.group(1), i) for i in range(int(m.group(2)), int(m.group(3)) + 1)]
    if tok == "vcc": return [("s", 106), ("s", 107)]
    if tok == "m0": return [("s", 124)]
    if tok == "exec": return [("s", 126), ("s", 127)]
    return []
def split_ops(s):
    out = []; depth = 0; cur = ""
    for ch in s:
        if ch == "[": depth += 1
        if ch == "]": depth -= 1
        if ch == "," and depth == 0: out.append(cur.strip()); cur = ""
        else: cur += ch
    if cur.strip(): out.append(cur.strip())
    return out
class Ins:
    def __init__(self, text):
        self.text = text
        parts = text.strip().split(None, 1)
        self.op = op = parts[0]
        rest = parts[1] if len(parts) > 1 else ""
        ops = split_ops(rest)
        mods = ""
        if ops:
            last = ops[-1].split(None, 1)
            ops[-1] = last[0]
            mods = last[1] if len(last) > 1 else ""
        self.ops = ops; self.mods = mods
        R = [regs_of(o) for o in ops]
        self.dst = []; self.src = []; self.kind = "other"; self.A = self.B = self.C = []
        self.ws = 1
        if op == "s_nop": self.kind = "nop"; self.ws = int(ops[0], 0) + 1
        elif op.startswith("v_mfma"):
            self.kind = "mfma"; self.dst = R[0]; self.A, self.B, self.C = R[1], R[2], R[3]; self.src = R[1] + R[2] + R[3]
        elif op.startswith("v_"):
            self.kind = "valu"
            if op.startswith("v_permlane") and "swap" in op:
                self.dst = R[0] + R[1]; self.src = R[0] + R[1]
            else:
                nd = 2 if re.match(r"v_(add|sub|subrev|addc|subb)_co_", op) or op.startswith("v_mad_u64") else 1
                self.dst = sum(R[:nd], []); self.src = sum(R[nd:], [])
                if op.startswith(("v_fmac", "v_dot2c", "v_pk_fmac")): self.src += R[0]
                if op.startswith("v_cndmask") and len(ops) == 3: self.src += regs_of("vcc")
        elif op.startswith("ds_read") or op.startswith("ds_bpermute") or op.startswith("ds_swizzle"):
            self.kind = "ds"; self.dst = R[0]; self.src = sum(R[1:], [])
        elif op.startswith("ds_"):
            self.kind = "ds"; self.src = sum(R, [])
        elif op.startswith(("buffer_load", "global_load")):
            self.kind = "vmem"
            if "lds" in mods.split() or op.startswith("global_load_lds"):
                self.src = sum(R, []) + regs_of("m0"); self.dma = True
            else:
                self.dst = R[0]; self.src = sum(R[1:], [])
        elif op.startswith(("buffer_store", "global_store", "buffer_atomic", "global_atomic")):
            self.kind = "vmem"; self.src = sum(R, [])
            if "atomic" in op and "sc0" in mods.split(): self.dst = R[0]
        elif op.startswith("s_"):
            self.kind = "salu"
            if op.startswith(("s_cmp", "s_cbranch", "s_branch", "s_waitcnt", "s_barrier", "s_sleep", "s_setprio", "s_endpgm", "s_bitcmp")):
                self.src = sum(R, [])
            else:
                self.dst = R[0] if R else []; self.src = sum(R[1:], [])
                if "saveexec" in op: self.dst = self.dst + regs_of("exec")
        self.trans = op in TRANS
        self.dot = op.startswith("v_dot")
        self.dpp = any(m.startswith(("row_", "quad_perm", "wave_")) for m in mods.split())
        self.wide_store_data = []
        if re.match(r"(buffer|global)_store_dwordx[34]", op):
            self.wide_store_data = R[0] if op.startswith("buffer") else R[1]

def need(p, c):
    n = 0
    pd = set(p.dst); cs = set(c.src); cd = set(c.dst)
    if p.kind == "valu":
        vd = {r for r in pd if r[0] != "s"}; sd = {r for r in pd if r[0] == "s"}
        if c.kind == "mfma" and vd & cs: n = max(n, 2)
        if p.trans and c.kind == "valu" and not c.trans and vd & cs: n = max(n, 1)
        if p.trans and c.kind == "valu" and c.trans and vd & cs: n = max(n, 1)
        if sd & cs:
            if c.kind == "vmem": n = max(n, 5)
            if c.kind in ("valu", "mfma"): n = max(n, 4 if c.op.startswith(("v_readlane", "v_writelane")) else 2)
            if c.kind == "salu": n = max(n, 1)
        if c.op.startswith(("v_readfirstlane", "v_readlane")) and vd & cs: n = max(n, 1)
        if (c.op.startswith("v_permlane") or c.dpp) and vd & cs: n = max(n, 2)
        if p.dot and (vd & (cs | cd)):
            if not (c.op == p.op and not (vd & set(sum([regs_of(o) for o in c.ops[1:3]], [])))): n = max(n, 3)
    if p.kind == "mfma":
        big = "32x32" in p.op
        if c.kind == "mfma":
            if pd & set(c.A + c.B): n = max(n, 12 if big else 8)
            if pd & set(c.C) and (p.dst != c.C): n = max(n, 10 if big else 6)
            if pd & cd and not (p.dst == c.C): n = max(n, 12 if big else 8)
        elif c.kind in ("valu", "vmem", "ds"):
            if pd & (cs | cd): n = max(n, 12 if big else 8)
        if c.kind == "valu" and set(p.C) & cd: n = max(n, 7 if big else 3)
    if p.wide_store_data and set(p.wide_store_data) & cd: n = max(n, 2)
    if p.kind == "salu" and ("s", 124) in pd and getattr(c, "dma", False): n = max(n, 1)
    return n

class Em:
    def __init__(self):
        self.lines = []; self.hist = []
        self.vm = []; self.lg = []
        self.nlabel = 0; self.nnops = 0; self.seen = set()
    def raw(self, s): self.lines.append(s)
    def comment(self, s): self.lines.append("  ; " + s)
    def __call__(self, text, tag=None, optional=False):
        ins = Ins(text)
        dist = 0; pad = 0
        for p in reversed(self.hist):
            n = need(p, ins)
            if n > dist: pad = max(pad, n - dist)
            dist += p.ws
            if dist > 20: break
        if pad:
            self.nnops += 1
            nop = Ins(f"s_nop {pad-1}")
            self.lines.append("  " + nop.text); self.hist.append(nop)
        self.lines.append("  " + text); self.hist.append(ins)
        self.hist = self.hist[-24:]
        self.seen.add(tag)
        if ins.kind == "vmem": self.vm.append((tag, optional))
        if ins.kind == "ds": self.lg.append((tag, optional))
        return ins
    def _cnt(self, lst, tags):
        for t in tags: assert t in self.seen, f"wait on never-issued tag {t}"
        idx = -1
        for i, (t, o) in enumerate(lst):
            if t in tags: idx = i
        if idx < 0: return None
        return sum(1 for (t, o) in lst[idx+1:] if not o), idx
    def wait_vm(self, *tags):
        r = self._cnt(self.vm, tags)
        if r is None: return
        n, idx = r
        n = min(n, 63)
        self(f"s_waitcnt vmcnt({n})"); self.vm = self.vm[idx+1:]
    def wait_lg(self, *tags):
        r = self._cnt(self.lg, tags)
        if r is None: return
        n, idx = r
        n = min(n, 15)
        self(f"s_waitcnt lgkmcnt({n})"); self.lg = self.lg[idx+1:]
    def wait_vm0(self): self("s_waitcnt vmcnt(0)"); self.vm = []
    def wait_lg0(self): self("s_waitcnt lgkmcnt(0)"); self.lg = []
    def label(self, name): self.lines.append(name + ":")
    def newlabel(self, p="L"): self.nlabel += 1; return f"{p}{self.nlabel}"
    def fence(self, n=8):
        worst = 0; dist = 0
        for p in reversed(self.hist):
            m = {"mfma": 8, "valu": 5}.get(p.kind, 2 if p.wide_store_data else 1 if p.kind == "salu" else 0)
            worst = max(worst, m - dist); dist += p.ws
            if dist > 12: break
        if worst > 0: self(f"s_nop {worst-1}")
        self.hist = []
    def save(self): return (list(self.hist), list(self.vm), list(self.lg))
    def restore(self, st): self.hist, self.vm, self.lg = list(st[0]), list(st[1]), list(st[2])
    def text(self): return "\n".join(self.lines) + "\n"
```

```python
import sys
from emit import Em
from asmlib import NAME
STAMPS = "--stamps" in sys.argv
OUT = [a for a in sys.argv[1:] if not a.startswith("--")]
OUT = OUT[0] if OUT else "k.s"

CNT=0; CSTR=256
UOFF=0x100000; HOFF=0x300000; STOFF=0x500000; WDOFF=0x580000; ACTOFF=0x700000; STAMPOFF=0xD00000
ACT_T=49152; ACT_G=8*ACT_T
LX=0; SLOT=24640; UPO=12288+32
LSLOT=[32768+i*SLOT for i in range(5)]
LMISC=32768+5*SLOT
LPART=LMISC
LRT=LMISC+4608
LU=LMISC-8192*0
LU=24640+0
LU=LSLOT[2]
LST=131072
CHUNK_SLOT=[LSLOT[0],LSLOT[1],LSLOT[2],LSLOT[3],LSLOT[4], 0, LSLOT[0], LSLOT[1]]
LDS_TOTAL=163840
assert LRT+512<=LDS_TOTAL
sX,sRE,sIM,sG,sU,sD,sO,sW,sB = [f"s[{28+4*i}:{31+4*i}]" for i in range(9)]
sWV,sS2,sQ,sGA,sMU,sT1,sJB,sCLS = [f"s{64+i}" for i in range(8)]
sT=[f"s{72+i}" for i in range(8)]
sONE="s3"
def v(i,n=1): return f"v{i}" if n==1 else f"v[{i}:{i+n-1}]"
def a(i,n=1): return f"a{i}" if n==1 else f"a[{i}:{i+n-1}]"
vL,vI,vG,vL16="v1","v2","v3","v4"
E=Em()
nst=[0]
def stamp():
    if STAMPS:
        i=nst[0]
        E.wait_lg0(); E(f"s_memrealtime s[100:101]"); E("s_waitcnt lgkmcnt(0)"); E(f"s_mov_b32 s{5+i}, s100")
    nst[0]+=1
POLL_LIMIT=0x20000
def poll(vaddr, srd, target, vtmp="v5"):
    skip=E.newlabel(); loop=E.newlabel()
    E(f"s_cmp_lg_u32 {sWV}, 0"); E(f"s_cbranch_scc1 {skip}")
    st=E.save()
    E(f"s_mov_b32 {sT[7]}, {POLL_LIMIT}")
    E.label(loop)
    E(f"buffer_load_dword {vtmp}, {vaddr}, {srd}, 0 offen sc1")
    E("s_waitcnt vmcnt(0)")
    E(f"v_cmp_ne_u32 vcc, {target}, {vtmp}")
    E(f"s_cbranch_vccz {skip}")
    E(f"s_sub_u32 {sT[7]}, {sT[7]}, 1"); E(f"s_cbranch_scc0 {loop}")
    E.restore(st); E.label(skip); E.hist=[]
    E("s_barrier")

if STAMPS: E("s_memrealtime s[98:99]")
nst[0]=1
E("s_cmp_ge_u32 s2, 256"); E("s_cbranch_scc1 Lend")
E("s_load_dwordx16 s[4:19], s[0:1], 0"); E("s_load_dwordx8 s[20:27], s[0:1], 64")
E("v_lshrrev_b32 v5, 6, v0"); E(f"v_and_b32 {vL}, 63, v0"); E(f"v_readfirstlane_b32 {sWV}, v5")
E(f"v_and_b32 {vI}, 15, v0"); E(f"v_lshrrev_b32 {vG}, 4, {vL}"); E(f"v_lshlrev_b32 {vL16}, 4, {vL}")
E(f"s_mov_b32 {sONE}, 0x3f803f80")
E(f"s_and_b32 {sS2}, s2, 7"); E(f"s_lshr_b32 {sT[0]}, s2, 5"); E(f"s_lshl_b32 {sT[0]}, {sT[0]}, 3"); E(f"s_or_b32 {sS2}, {sS2}, {sT[0]}")
E(f"s_bfe_u32 {sQ}, s2, 0x20003")
E(f"s_and_b32 {sGA}, s2, 15"); E(f"s_lshr_b32 {sMU}, s2, 4"); E(f"s_and_b32 {sCLS}, {sMU}, 1"); E(f"s_lshr_b32 {sJB}, {sMU}, 1")
E(f"s_sub_u32 {sT[0]}, 32, {sGA}"); E(f"s_cmp_eq_u32 {sGA}, 0"); E(f"s_cselect_b32 {sT[0]}, 16, {sT[0]}")
E(f"s_cmp_eq_u32 {sCLS}, 0"); E(f"s_cselect_b32 {sT1}, {sGA}, {sT[0]}")
E(f"s_and_b32 {sT[0]}, {sWV}, 1"); E(f"s_lshl_b32 {sT[0]}, {sT[0]}, 7"); E(f"v_xor_b32 v6, {sT[0]}, {vL16}")
E(f"s_lshl_b32 {sT[1]}, {sQ}, 6"); E(f"s_add_u32 {sT[1]}, {sT[1]}, {sWV}")
E(f"v_lshl_add_u32 v7, {vI}, 2, {sT[1]}"); E("v_mov_b32 v8, 256"); E("v_cmp_eq_u32 vcc, 0, v7"); E("v_cndmask_b32 v7, v7, v8, vcc")
E("v_lshlrev_b32 v7, 10, v7"); E(f"v_lshl_add_u32 v7, {vG}, 4, v7")
E(f"s_lshl_b32 {sT[2]}, {sWV}, 19"); E(f"s_lshl_b32 {sT[3]}, {sS2}, 10"); E(f"s_add_u32 {sT[2]}, {sT[2]}, {sT[3]}")
E(f"s_lshl_b32 {sT[3]}, {sWV}, 13")
E("s_waitcnt lgkmcnt(0)")
def srd(base, lo, size):
    E(f"s_mov_b32 s{base}, s{lo}"); E(f"s_and_b32 s{base+1}, s{lo+1}, 0xffff"); E(f"s_mov_b32 s{base+2}, {size}"); E(f"s_mov_b32 s{base+3}, 0x20000")
srd(28,4,2097152); srd(56,26,0x1000000)
Lnz=E.newlabel()
E(f"s_lshl_b32 s85, s2, 2"); E(f"s_add_u32 s85, s85, {sWV}")
E(f"s_cmp_lg_u32 s85, 2"); E(f"s_cbranch_scc1 {Lnz}")
E(f"v_lshlrev_b32 v9, 8, {vL}"); E("v_mov_b32 v10, 0"); E(f"s_mov_b32 {sT[5]}, {64*CSTR}")
E(f"buffer_store_dword v10, v9, {sW}, 0 offen sc1", tag="zero", optional=True)
E(f"buffer_store_dword v10, v9, {sW}, {sT[5]} offen sc1", tag="zero", optional=True)
E.label(Lnz)
for k in range(8):
    E(f"s_mov_b32 m0, {sT[3]}")
    if k: E(f"v_xor_b32 v5, {k<<4}, v6")
    E(f"buffer_load_dwordx4 {'v5' if k else 'v6'}, {sX}, {sT[2]} offen lds", tag="x")
    if k<7: E(f"s_add_u32 {sT[3]}, {sT[3]}, 1024"); E(f"s_add_u32 {sT[2]}, {sT[2]}, 65536")
srd(32,10,524288); srd(36,12,524288)
BC,BS=60,76
for k in range(4):
    E(f"buffer_load_dwordx4 {v(BC+4*k,4)}, v7, {sRE}, 0 offen offset:{64*k}", tag="x")
    E(f"buffer_load_dwordx4 {v(BS+4*k,4)}, v7, {sIM}, 0 offen offset:{64*k}", tag="x")
srd(40,16,1409024); srd(44,18,1409024); srd(48,20,1409024); srd(52,22,2097152); srd(60,24,256)
E(f"s_getpc_b64 s[4:5]"); E.label("Lpc")
E(f"v_lshlrev_b32 v5, 7, v0")
E(f"v_min_u32 v5, Lend-Lpc, v5")
E(f"global_load_dword v27, v5, s[4:5]", tag="pf")
for k in range(3):
    E(f"v_add_u32 v5, {64*k}, {vL}"); E(f"v_mul_u32_u24 v8, 0x1556, v5"); E("v_lshrrev_b32 v8, 16, v8")
    E(f"v_mul_u32_u24 v10, 12, v8"); E("v_sub_u32 v5, v5, v10"); E("v_lshlrev_b32 v5, 4, v5")
    E(f"v_mul_u32_u24 v8, {4*2752}, v8")
    E(f"v_add_u32 v{16+k}, v8, v5")
    E(f"v_sub_u32 v{19+k}, v5, v8"); E(f"v_add_u32 v{19+k}, {60*2752}, v{19+k}")
E(f"v_add_u32 v22, {256*2752}, v19"); E(f"s_cmp_eq_u32 {sWV}, 0"); E(f"s_cselect_b32 {sT[0]}, 12, 0")
E(f"v_cmp_gt_u32 vcc, {sT[0]}, {vL}"); E("v_cndmask_b32 v22, v22, v19, vcc")
sWD,sWM="s80","s81"
E(f"s_mul_i32 {sT[0]}, {sMU}, 192"); E(f"s_mul_i32 {sT[1]}, {sWV}, 2752")
E(f"s_add_u32 {sWD}, {sT[0]}, {sT[1]}"); E(f"s_sub_u32 {sWM}, {sT[0]}, {sT[1]}"); E(f"s_add_u32 {sWM}, {sWM}, {452*2752}")
sWL="s82"
E(f"s_mul_i32 {sWL}, {sWV}, 3072")
def wchunk(c):
    slot=CHUNK_SLOT[c]
    if c<4: E(f"s_add_u32 {sT[0]}, {sWD}, {64*c*2752}")
    else:   E(f"s_sub_u32 {sT[0]}, {sWM}, {64*(c-4)*2752}")
    if c==4: E(f"s_sub_u32 {sT[1]}, {sT[0]}, {256*2752}")
    for mi,(S,o) in enumerate(((sG,0),(sU,UPO))):
        for k in range(3):
            E(f"s_add_u32 m0, {sWL}, {slot+o+1024*k}")
            vo=f"v{16+k}" if c<4 else f"v{19+k}"; so=sT[0]
            if c==4 and k==0: vo="v22"; so=sT[1]
            E(f"buffer_load_dwordx4 {vo}, {S}, {so} offen lds", tag=f"w{c}")
F64=28
E(f"s_lshl_b32 {sT[0]}, {sWV}, 17"); E(f"v_lshlrev_b32 v5, 13, {vI}"); E(f"v_lshl_add_u32 v5, {vG}, 4, v5")
for k in range(4):
    E(f"buffer_load_dwordx4 {v(F64+4*k,4)}, v5, {sRE if k<2 else sIM}, {sT[0]} offen offset:{64*(k&1)}", tag="f64")
RP=220; sJOB="s83"
Lnr=E.newlabel()
E(f"s_mov_b32 {sJOB}, 999"); E(f"s_cmp_eq_u32 {sWV}, 1"); E(f"s_cselect_b32 {sJOB}, s2, {sJOB}")
E(f"s_add_u32 {sT[0]}, s2, 256"); E(f"s_cmp_eq_u32 {sWV}, 3"); E(f"s_cselect_b32 {sJOB}, {sT[0]}, {sJOB}")
E(f"s_cmp_ge_u32 {sJOB}, 344"); E(f"s_cbranch_scc1 {Lnr}")
E(f"s_lshr_b32 {sT[0]}, {sJOB}, 3"); E(f"s_lshl_b32 {sT[0]}, {sT[0]}, 2"); E(f"v_add_u32 v5, {sT[0]}, {vG}")
E("v_mul_u32_u24 v8, 0x5556, v5"); E("v_lshrrev_b32 v8, 16, v8")
E("v_mul_u32_u24 v10, 3, v8"); E("v_sub_u32 v5, v5, v10")
E("v_mul_u32_u24 v8, 24, v8")
E("v_lshlrev_b32 v10, 2, v5"); E("v_add_u32 v10, 4, v10"); E("v_cmp_eq_u32 vcc, 0, v5"); E("v_cndmask_b32 v10, v10, v5, vcc")
E("v_add_u32 v8, v8, v10")
E("v_mov_b32 v10, 8"); E("v_cndmask_b32 v10, v10, 4, vcc") ; E("v_add_u32 v10, v8, v10")
E(f"s_and_b32 {sT[0]}, {sJOB}, 7"); E(f"s_lshl_b32 {sT[0]}, {sT[0]}, 7")
E(f"v_lshlrev_b32 v5, 3, {vI}"); E("v_lshl_add_u32 v8, v8, 10, v5"); E("v_lshl_add_u32 v10, v10, 10, v5")
for s_ in range(8):
    E(f"buffer_load_dwordx2 {v(RP+2*s_,2)}, {'v8' if s_<4 else 'v10'}, {sD}, {sT[0]} offen offset:{1024*(s_&3)}", tag="rp", optional=True)
E.label(Lnr); E.hist=[]
for c in range(5): wchunk(c)
Lnz=E.newlabel()
E(f"s_cmp_lg_u32 s85, 2"); E(f"s_cbranch_scc1 {Lnz}")
st=E.save(); E.wait_vm("zero"); E("v_mov_b32 v9, 0"); E("v_mov_b32 v10, 1"); E("s_mov_b64 exec, 1")
E(f"buffer_store_dword v10, v9, {sB}, 0 offen sc1"); E("s_mov_b64 exec, -1"); E.restore(st); E.vm.append(("flag",True))
E.label(Lnz); E.hist=[]
G=92
def Gf(tau,j): return G+16*tau+4*j
E(f"s_bitcmp1_b32 {sS2}, 3"); E(f"s_cselect_b32 {sT[0]}, 0xbe800000, 0"); E(f"s_cselect_b32 {sT[1]}, 0x80008000, 0"); E(f"s_cselect_b32 {sT[2]}, 0, 0x80008000")
E(f"v_lshlrev_b32 v5, 8, {vG}"); E(f"v_add_u32 v5, {sS2}, v5"); E("v_cvt_f32_u32 v5, v5"); E("v_mul_f32 v5, 0x3a000000, v5")
import struct
def fbits(x): return "0x%08x"%struct.unpack("<I",struct.pack("<f",x))[0]
for tau in range(2):
    E(f"v_add_u32 v8, {16*tau}, {vI}"); E("v_cvt_f32_u32 v8, v8")
    E(f"v_mov_b32 v9, {sT[0]}"); E("v_fmac_f32 v9, v8, v5")
    for j in range(4):
        for hh in range(2):
            sg=2*j+hh; mult=((sg&3)+16*(sg>>2))/32.0
            E(f"v_fmamk_f32 v{10+hh}, v8, {fbits(mult)}, v9"); E(f"v_fract_f32 v{10+hh}, v{10+hh}")
        E("v_cos_f32 v12, v10"); E("v_cos_f32 v13, v11"); E("v_sin_f32 v14, v10"); E("v_sin_f32 v15, v11")
        E(f"v_cvt_pk_bf16_f32 v{Gf(tau,0)+j}, v12, v13"); E(f"v_cvt_pk_bf16_f32 v{Gf(tau,1)+j}, v14, v15")
        E(f"v_xor_b32 v{Gf(tau,2)+j}, {sT[1]}, v{Gf(tau,1)+j}"); E(f"v_xor_b32 v{Gf(tau,3)+j}, {sT[2]}, v{Gf(tau,0)+j}")
E(f"v_xor_b32 v5, {vG}, {vI}"); E("v_lshlrev_b32 v5, 4, v5"); E(f"v_lshl_add_u32 v8, {vI}, 10, v5")
for k in range(1,4): E(f"v_xor_b32 v{8+k}, {k<<6}, v8")
E(f"s_lshl_b32 {sT[0]}, {sWV}, 5"); E(f"s_add_u32 {sT[0]}, {sT[0]}, {LPART}"); E(f"v_mul_u32_u24 v12, 144, {vI}"); E(f"v_lshl_add_u32 v12, {vG}, 3, v12"); E(f"v_add_u32 v12, {sT[0]}, v12")
E(f"v_and_b32 v5, 31, {vL}"); E("v_mul_u32_u24 v13, 144, v5"); E(f"v_and_b32 v6, 32, {vL}"); E("v_lshl_add_u32 v13, v6, 1, v13"); E(f"v_add_u32 v13, {LPART}, v13")
E(f"s_lshl_b32 {sT[0]}, {sWV}, 7"); E(f"s_add_u32 {sT[0]}, {sT[0]}, {LRT}"); E(f"v_lshl_add_u32 v14, v5, 2, {sT[0]}"); E(f"v_lshl_add_u32 v15, {vG}, 4, {sT[0]}")
E(f"v_lshlrev_b32 v7, 16, {vI}"); E(f"v_lshl_add_u32 v7, {vG}, 4, v7")
sUS="s84"
E(f"s_lshr_b32 {sT[0]}, {sWV}, 1"); E(f"s_lshl_b32 {sT[1]}, {sQ}, 1"); E(f"s_add_u32 {sT[0]}, {sT[0]}, {sT[1]}"); E(f"s_lshl_b32 {sT[0]}, {sT[0]}, 13")
E(f"s_lshl_b32 {sT[1]}, {sS2}, 7"); E(f"s_add_u32 {sT[0]}, {sT[0]}, {sT[1]}")
E(f"s_lshr_b32 {sT[1]}, {sS2}, 1"); E(f"s_xor_b32 {sT[1]}, {sT[1]}, {sWV}"); E(f"s_and_b32 {sT[1]}, {sT[1]}, 1"); E(f"s_lshl_b32 {sT[1]}, {sT[1]}, 6")
E(f"s_add_u32 {sT[0]}, {sT[0]}, {sT[1]}"); E(f"s_add_u32 {sUS}, {sT[0]}, {UOFF}")
stamp()
E.wait_vm("x"); E("s_barrier")
stamp()
ACC=124; AR=156; NR=16
def acc(name,rho): return ACC+16*rho+4*{"aP":0,"aM":1,"bP":2,"bM":3}[name]
Lj=E.newlabel(); Lw=[E.newlabel() for _ in range(4)]
for w in range(1,4):
    E(f"s_cmp_eq_u32 {sWV}, {w}"); E(f"s_cbranch_scc1 {Lw[w]}")
st0=E.save()
SA=44
for w in range(4):
    E.restore(st0); E.label(Lw[w]); E.hist=[]
    frs=[(b%4,k,rho) for b in range(w,w+4) for k in range(4) for rho in range(2)]
    used=set()
    def rd(n):
        b,k,rho=frs[n]
        E(f"ds_read_b128 {v(AR+4*(n%NR),4)}, v{8+k} offset:{rho*16384+b*256}", tag=f"f{n}")
    for n in range(12): rd(n)
    for j in range(4): E(f"v_mov_b32 v{SA+j}, 0")
    fill=[]
    def Q(t,**kw): fill.append(lambda: E(t,**kw))
    for n in range(32):
        b,k,rho=frs[n]; p=(w*b)&3; fr=AR+4*(n%NR)
        E.wait_lg(f"f{n}")
        for (B,names) in ((BC,("aP","bM","aM","bP")),(BS,("bP","aP","bM","aM"))):
            d=acc(names[p],rho); c=v(d,4) if (names[p],rho) in used else "0"; used.add((names[p],rho))
            E(f"v_mfma_f32_16x16x32_bf16 {v(d,4)}, {v(fr,4)}, {v(B+4*k,4)}, {c}")
            if n<8:
                for j in (0,1) if B==BC else (2,3):
                    E(f"v_dot2c_f32_bf16 v{SA+2*rho}, {sONE}, v{fr+j}"); E(f"v_dot2c_f32_bf16 v{SA+2*rho+1}, v{fr+j}, v{fr+j}")
            else:
                for _ in range(2):
                    if fill: fill.pop(0)()
        if n+12<32: rd(n+12)
        if n==7:
            Q(f"ds_write_b64 v12, {v(SA,2)}", tag="sw"); Q(f"ds_write_b64 v12, {v(SA+2,2)} offset:{16*144}", tag="sw")
            fill.append(lambda: None); fill.append(lambda: None); fill.append(lambda: None); fill.append(lambda: None)
            def bar(): E.wait_lg("sw"); E("s_barrier")
            fill.append(bar)
            for j in range(4): Q(f"ds_read_b128 {v(SA+4*j,4)}, v13 offset:{16*j}", tag="sr")
            for _ in range(8): fill.append(lambda: None)
            fill.append(lambda: E.wait_lg("sr"))
            for j in range(8): Q(f"v_add_f32 v{SA+j}, v{SA+j}, v{SA+8+j}")
            for j in range(4): Q(f"v_add_f32 v{SA+j}, v{SA+j}, v{SA+4+j}")
            for j in range(2): Q(f"v_add_f32 v{SA+j}, v{SA+j}, v{SA+2+j}")
            Q(f"v_mov_b32 v{SA+2}, v{SA}"); Q(f"v_mov_b32 v{SA+3}, v{SA+1}")
            fill.append(lambda: None); fill.append(lambda: None)
            Q(f"v_permlane32_swap_b32 v{SA}, v{SA+2}"); Q(f"v_permlane32_swap_b32 v{SA+1}, v{SA+3}")
            Q(f"v_add_f32 v{SA}, v{SA}, v{SA+2}"); Q(f"v_add_f32 v{SA+1}, v{SA+1}, v{SA+3}")
            Q(f"v_mul_f32 v{SA}, {fbits(1/512)}, v{SA}"); Q(f"v_mov_b32 v{SA+2}, {fbits(1e-5)}")
            Q(f"v_fmamk_f32 v{SA+1}, v{SA+1}, {fbits(1/512)}, v{SA+2}"); Q(f"v_fma_f32 v{SA+1}, -v{SA}, v{SA}, v{SA+1}")
            Q(f"v_max_f32 v{SA+1}, v{SA+1}, v{SA+2}")
            Q(f"v_rsq_f32 v{SA+1}, v{SA+1}"); fill.append(lambda: None)
            Q(f"ds_write_b32 v14, v{SA+1}", tag="rw")
            Q(f"ds_read_b128 {v(SA+4,4)}, v15", tag="rr"); Q(f"ds_read_b128 {v(SA+8,4)}, v15 offset:64", tag="rr")
    while fill: fill.pop(0)()
    E.wait_lg("rr")
    for (P,M,dst) in (("aP","aM",AR),("bP","bM",AR+4)):
        for rho in range(2):
            for r in range(4):
                x=acc(P,rho)+r
                if (M,rho) in used: E(f"v_sub_f32 v{x}, v{x}, v{acc(M,rho)+r}")
                E(f"v_mul_f32 v{x}, v{x}, v{SA+4+4*rho+r}")
            for j in range(2): E(f"v_cvt_pk_bf16_f32 v{dst+2*rho+j}, v{acc(P,rho)+2*j}, v{acc(P,rho)+2*j+1}")
    if w<3: E(f"s_branch {Lj}")
E.label(Lj); E.hist=[]; E("s_nop 1")
S2A=AR+8
for tau in range(2):
    for part in range(2): E(f"v_mfma_f32_16x16x32_bf16 {v(S2A+8*tau+4*part,4)}, {v(AR,4)}, {v(Gf(tau,2*part),4)}, 0")
for tau in range(2):
    for part in range(2): E(f"v_mfma_f32_16x16x32_bf16 {v(S2A+8*tau+4*part,4)}, {v(AR+4,4)}, {v(Gf(tau,2*part+1),4)}, {v(S2A+8*tau+4*part,4)}")
E("v_mov_b32 v6, 0"); E(f"buffer_load_dword v26, v6, {sB}, 0 offen sc1", tag="rdy")
E(f"s_add_u32 {sT[0]}, {sUS}, 0x100000")
for tau in range(2):
    o=S2A+16+4*tau
    for j in range(4): E(f"v_cvt_pk_bf16_f32 v{o+j}, v{S2A+8*tau+2*j}, v{S2A+8*tau+2*j+1}")
    E(f"buffer_store_dwordx4 {v(o,4)}, v7, {sW}, {sUS if tau==0 else sT[0]} offen sc1", tag="ust")
stamp()
Lnr=E.newlabel()
E(f"s_cmp_ge_u32 {sJOB}, 344"); E(f"s_cbranch_scc1 {Lnr}")
st=E.save()
E.wait_vm("rp")
E(f"s_mov_b32 {sT[0]}, 0x05040100"); E(f"s_mov_b32 {sT[1]}, 0x07060302")
E(f"s_and_b32 {sT[2]}, {sJOB}, 7"); E(f"s_mul_i32 {sT[2]}, {sT[2]}, 43"); E(f"s_lshr_b32 {sT[3]}, {sJOB}, 3"); E(f"s_add_u32 {sT[2]}, {sT[2]}, {sT[3]}")
E(f"s_lshl_b32 {sT[2]}, {sT[2]}, 12"); E(f"s_add_u32 {sT[2]}, {sT[2]}, {WDOFF}")
for m in range(4):
    for j in range(4):
        E(f"v_perm_b32 v{RP+16+4*m+j}, v{RP+2*(2*j+1)+(m>>1)}, v{RP+2*(2*j)+(m>>1)}, {sT[m&1]}")
    E(f"buffer_store_dwordx4 {v(RP+16+4*m,4)}, {vL16}, {sW}, {sT[2]} offen offset:{1024*m} sc1")
E.restore(st); E.label(Lnr); E.hist=[]
E.wait_vm0(); E("s_barrier")
stamp()
Ls=E.newlabel(); Lr=E.newlabel(); Lr2=E.newlabel()
E(f"s_cmp_lg_u32 {sWV}, 0"); E(f"s_cbranch_scc1 {Ls}")
E(f"s_mov_b32 {sT[7]}, {POLL_LIMIT}")
E.label(Lr)
E("v_cmp_ne_u32 vcc, 1, v26"); E(f"s_cbranch_vccz {Lr2}")
E(f"buffer_load_dword v26, v6, {sB}, 0 offen sc1"); E("s_waitcnt vmcnt(0)")
E(f"s_sub_u32 {sT[7]}, {sT[7]}, 1"); E(f"s_cbranch_scc0 {Lr}")
E.label(Lr2)
E(f"s_lshl_b32 {sT[0]}, {sQ}, 4"); E(f"s_and_b32 {sT[1]}, {sS2}, 3"); E(f"s_add_u32 {sT[0]}, {sT[0]}, {sT[1]}"); E(f"s_lshl_b32 {sT[0]}, {sT[0]}, 8")
E(f"v_lshlrev_b32 v5, 10, {vL}"); E("v_mov_b32 v6, 1"); E("s_mov_b64 exec, 15")
E(f"buffer_atomic_add v6, v5, {sW}, {sT[0]} offen"); E("s_mov_b64 exec, -1")
E.vm=[("sig",True)]
E.label(Ls); E.hist=[]
wchunk(5)
E(f"v_lshrrev_b32 v5, 2, {vL}"); E("v_mul_u32_u24 v23, 192, v5"); E(f"v_and_b32 v5, 1, {vL}"); E("v_lshl_add_u32 v23, v5, 3, v23")
E(f"v_bfe_u32 v5, {vL}, 1, 1"); E(f"v_mul_u32_u24 v5, {UPO}, v5"); E(f"s_mul_i32 {sT[0]}, {sWV}, 48"); E(f"v_add3_u32 v23, v23, v5, {sT[0]}")
E("v_add_u32 v24, 0x10000, v23"); E("v_add_u32 v25, 0x20000, v23")
def Wf(k,m): return (k*3+m)*4
def trchunk(c):
    for kk in range(2):
        for m in range(3):
            for eta in range(2):
                off=CHUNK_SLOT[c]+(kk*2+eta)*3072+16*m
                E(f"ds_read_b64_tr_b16 {a(Wf(2*c+kk,m)+2*eta,2)}, v{23+(off>>16)} offset:{off&0xffff}")
for c in range(5): trchunk(c)
E.wait_lg0(); E("s_barrier")
wchunk(6); wchunk(7)
XR=44
for j in range(16): E(f"v_mov_b32 v{XR+j}, 0")
E(f"s_lshl_b32 {sT[0]}, {sWV}, 4"); E(f"v_add_u32 v8, {sT[0]}, {vI}"); E(f"v_lshl_add_u32 v5, v8, 5, {sT1}")
E(f"s_lshr_b32 {sT[0]}, {sJB}, 1"); E(f"s_lshl_b32 {sT[0]}, {sT[0]}, 7"); E(f"s_and_b32 {sT[1]}, {sJB}, 1"); E(f"s_lshl_b32 {sT[1]}, {sT[1]}, 2"); E(f"s_add_u32 {sT[0]}, {sT[0]}, {sT[1]}")
E(f"v_lshl_add_u32 v6, {vG}, 5, {sT[0]}")
E("v_lshl_add_u32 v9, v5, 10, v6")
E("v_sub_u32 v5, 0x800, v5"); E("v_and_b32 v5, 0x7ff, v5"); E("v_lshlrev_b32 v5, 10, v5"); E("v_sub_u32 v10, v5, v6"); E(f"v_add_u32 v10, {1024-26}, v10")
E("v_subrev_u32 v11, 512, v10"); E("v_cmp_eq_u32 vcc, 0, v6"); E("v_cndmask_b32 v11, v10, v11, vcc")
E("v_mov_b32 v12, 1.0"); E("v_cndmask_b32 v12, v12, 0, vcc")
for eta in range(2):
    for r in range(4):
        E(f"buffer_load_short_d16_hi v{XR+4*eta+r}, v9, {sX}, 0 offen offset:{8*r+2*eta}", tag="xr")
        E(f"buffer_load_short_d16_hi v{XR+8+4*eta+r}, {'v11' if eta+r==0 else 'v10'}, {sX}, 0 offen offset:{26-8*r-2*eta}", tag="xr")
E(f"s_lshl_b32 {sT[0]}, {sCLS}, 6"); E(f"v_add_u32 v13, {sT[0]}, v8")
E(f"s_xor_b32 {sT[1]}, {sT[0]}, 64"); E(f"s_cmp_eq_u32 {sGA}, 0"); E(f"s_cselect_b32 {sT[1]}, {sT[0]}, {sT[1]}")
E(f"s_cmp_eq_u32 {sT1}, 0"); E(f"s_cselect_b32 {sT[2]}, 64, 63")
E(f"v_sub_u32 v14, {sT[2]}, v8"); E("v_and_b32 v14, 63, v14"); E(f"v_add_u32 v14, {sT[1]}, v14")
for (p,d) in ((13,9),(14,10)):
    E(f"v_lshrrev_b32 v5, 4, v{p}"); E(f"v_and_b32 v6, 15, v{p}"); E("v_lshlrev_b32 v5, 14, v5"); E("v_lshl_add_u32 v5, v6, 4, v5"); E(f"v_lshl_add_u32 v{d}, {vG}, 8, v5")
E(f"v_add_u32 v10, 8192, v10")
sHS="s86"; sSS="s87"
E(f"s_lshl_b32 {sT[0]}, {sGA}, 17"); E(f"s_lshl_b32 {sT[1]}, {sJB}, 10"); E(f"s_add_u32 {sHS}, {sT[0]}, {sT[1]}"); E(f"s_add_u32 {sHS}, {sHS}, {HOFF}")
E(f"v_cmp_gt_u32 vcc, 32, {vL}"); E("v_add_u32 v14, 2048, v14"); E("v_cndmask_b32 v11, v14, v13, vcc"); E("v_lshlrev_b32 v11, 2, v11")
E(f"v_and_b32 v5, 1, {vG}"); E("v_lshl_add_u32 v11, v5, 9, v11")
E(f"s_lshl_b32 {sT[0]}, {sGA}, 14"); E(f"s_add_u32 {sSS}, {sT[0]}, {sT[1]}"); E(f"s_add_u32 {sSS}, {sSS}, {STOFF}")
E(f"v_bfe_u32 v5, {vL}, 2, 2"); E(f"v_lshl_add_u32 v5, {vG}, 3, v5"); E("v_lshlrev_b32 v13, 7, v5")
E(f"v_bfe_u32 v5, {vL}, 3, 1"); E("v_lshl_add_u32 v13, v5, 6, v13"); E(f"v_and_b32 v5, 3, {vL}"); E("v_lshl_add_u32 v13, v5, 4, v13")
E(f"v_and_b32 v5, 1, {vG}"); E("v_lshl_add_u32 v13, v5, 3, v13")
E("v_xor_b32 v14, 8, v13"); E("v_xor_b32 v15, 64, v13"); E("v_xor_b32 v8, 0x48, v13")
for r_ in (13,14,15,8): E(f"v_add_u32 v{r_}, {LU}, v{r_}")
UB={(0,0):13,(0,1):14,(1,0):15,(1,1):8}
E(f"s_lshr_b32 {sT[0]}, {sJB}, 1"); E(f"s_lshl_b32 {sT[0]}, {sT[0]}, 2"); E(f"s_and_b32 {sT[1]}, {sGA}, 3"); E(f"s_add_u32 {sT[0]}, {sT[0]}, {sT[1]}"); E(f"s_lshl_b32 {sT[0]}, {sT[0]}, 10")
E(f"v_and_b32 v6, 3, {vL}"); E(f"v_lshl_add_u32 v6, v6, 8, {sT[0]}")
E(f"s_lshl_b32 {sT[0]}, {sT1}, 3"); E(f"s_add_u32 {sT[0]}, {sT[0]}, {sJB}"); E(f"s_lshl_b32 {sT[0]}, {sT[0]}, 13"); E(f"s_lshl_b32 {sT[1]}, {sWV}, 11")
E(f"s_add_u32 {sT[0]}, {sT[0]}, {sT[1]}"); E(f"s_add_u32 {sT[0]}, {sT[0]}, {UOFF}"); E(f"s_add_u32 m0, {sT[1]}, {LU}")
stamp()
poll("v6", sW, 16)
stamp()
E(f"buffer_load_dwordx4 {vL16}, {sW}, {sT[0]} offen sc1 lds"); E(f"buffer_load_dwordx4 {vL16}, {sW}, {sT[0]} offen offset:1024 sc1 lds")
E.wait_vm0(); E("s_barrier")
stamp()
UF=60; YA=92
for k in range(4):
    for eta in range(2):
        for hs in range(2):
            E(f"ds_read_b64_tr_b16 {v(UF+(k*2+eta)*4+2*hs,2)}, v{UB[(eta,k>>1)]} offset:{(32*(k&1)+4*hs)*128}", tag=f"u{k}{eta}")
        if k==3 and eta==0: pass
    if k==2: pass
for k in range(4):
    for eta in range(2):
        E.wait_lg(f"u{k}{eta}")
        E(f"v_mfma_f32_16x16x32_bf16 {v(YA+4*eta,4)}, {v(UF+(k*2+eta)*4,4)}, {v(F64+4*k,4)}, {v(YA+4*eta,4) if k else '0'}")
HP=100
for j in range(8):
    if j==0: E(f"v_fmac_f32 v{XR}, v{YA}, v12")
    else: E(f"v_add_f32 v{XR+j}, v{XR+j}, v{YA+j}")
for j in range(4): E(f"v_cvt_pk_bf16_f32 v{HP+j}, v{XR+2*j}, v{XR+2*j+1}")
E(f"buffer_store_dwordx4 {v(HP,4)}, v9, {sW}, {sHS} offen sc1")
for j in range(8): E(f"v_add_f32 v{XR+8+j}, v{XR+8+j}, v{YA+j}")
for j in range(4): E(f"v_cvt_pk_bf16_f32 v{HP+4+j}, v{XR+8+2*j}, v{XR+8+2*j+1}")
E(f"buffer_store_dwordx4 {v(HP+4,4)}, v10, {sW}, {sHS} offen sc1")
SS=108
for j in range(4): E(f"v_mov_b32 v{SS+j}, 0")
for j in range(4):
    for h in range(2):
        E(f"v_dot2c_f32_bf16 v{SS+2*h}, {sONE}, v{HP+4*h+j}"); E(f"v_dot2c_f32_bf16 v{SS+2*h+1}, v{HP+4*h+j}, v{HP+4*h+j}")
E(f"v_permlane32_swap_b32 v{SS}, v{SS+2}"); E(f"v_permlane32_swap_b32 v{SS+1}, v{SS+3}")
E(f"v_add_f32 v{SS}, v{SS}, v{SS+2}"); E(f"v_add_f32 v{SS+1}, v{SS+1}, v{SS+3}")
E(f"v_permlane16_swap_b32 v{SS}, v{SS+1}"); E(f"v_add_f32 v{SS}, v{SS}, v{SS+1}")
E(f"buffer_store_dword v{SS}, v11, {sW}, {sSS} offen sc1")
stamp()
E.wait_vm0(); E("s_barrier")
def signal(line_expr_sreg):
    Ls=E.newlabel()
    E(f"s_cmp_lg_u32 {sWV}, 0"); E(f"s_cbranch_scc1 {Ls}")
    E("v_mov_b32 v5, 1"); E("s_mov_b64 exec, 1")
    E(f"buffer_atomic_add v5, {line_expr_sreg}, {sW}, 0 offen", tag="sig", optional=True); E("s_mov_b64 exec, -1")
    E.label(Ls); E.hist=[]
E(f"s_lshl_b32 {sT[0]}, {sGA}, 8"); E(f"s_add_u32 {sT[0]}, {sT[0]}, {64*CSTR}"); E(f"v_mov_b32 v6, {sT[0]}")
signal("v6")
stamp()
for c in range(5,8): trchunk(c)
CS=28
for j in range(4): E(f"v_mov_b32 v{60+j}, {sONE}")
E.wait_lg0()
for k in range(16):
    for m in range(3):
        E(f"v_mfma_f32_16x16x32_bf16 {v(CS+4*m,4)}, {a(Wf(k,m),4)}, {v(60,4)}, {v(CS+4*m,4) if k else '0'}")
for j in range(12): E(f"v_mov_b32 v{CS+12+j}, v{CS+j}")
for j in range(12): E(f"v_permlane32_swap_b32 v{CS+j}, v{CS+12+j}")
sHB="s88"
E(f"s_lshl_b32 {sT[0]}, {sGA}, 17"); E(f"s_lshl_b32 {sT[1]}, {sWV}, 12"); E(f"s_add_u32 {sHB}, {sT[0]}, {sT[1]}"); E(f"s_add_u32 {sHB}, {sHB}, {HOFF}")
sW4="s89"; E(f"s_mov_b32 {sW4}, {sT[1]}")
sSB="s90"; E(f"s_lshl_b32 {sT[0]}, {sGA}, 14"); E(f"s_add_u32 {sSB}, {sT[0]}, {STOFF}")
E("v_lshlrev_b32 v7, 2, v0")
E(f"v_lshrrev_b32 v5, 1, {vG}"); E(f"v_mul_u32_u24 v5, {ACT_T}, v5"); E(f"v_lshl_add_u32 v5, {vI}, 4, v5"); E(f"v_and_b32 v10, 1, {vG}")
E("v_lshl_add_u32 v8, v10, 3, v5"); E("v_lshl_add_u32 v9, v10, 8, v5"); E("v_add_u32 v9, 256, v9")
sAS="s91"
E(f"s_mul_i32 {sT[0]}, {sGA}, {ACT_G}"); E(f"s_lshl_b32 {sT[1]}, {sMU}, 2"); E(f"s_add_u32 {sT[1]}, {sT[1]}, {sWV}"); E(f"s_mul_i32 {sT[1]}, {sT[1]}, 768")
E(f"s_add_u32 {sAS}, {sT[0]}, {sT[1]}"); E(f"s_add_u32 {sAS}, {sAS}, {ACTOFF}")
E(f"v_lshrrev_b32 v5, 1, {vG}"); E(f"v_lshl_add_u32 v5, v5, 4, {vI}"); E("v_lshlrev_b32 v5, 2, v5"); E(f"v_add_u32 v10, {LST}, v5"); E(f"v_add_u32 v11, {LST}, v7")
sWDS="s92"
E(f"s_mul_i32 {sT[0]}, {sJB}, 43"); E(f"s_mul_i32 {sT[1]}, {sWV}, 11"); E(f"s_add_u32 {sT[0]}, {sT[0]}, {sT[1]}"); E(f"s_lshl_b32 {sT[0]}, {sT[0]}, 12"); E(f"s_add_u32 {sWDS}, {sT[0]}, {WDOFF}")
stamp()
poll("v6", sW, 16)
stamp()
def hdma(t):
    E(f"s_add_u32 m0, {sW4}, {t*16384}"); E(f"s_add_u32 {sT[0]}, {sHB}, {t*16384}")
    for k in range(4): E(f"buffer_load_dwordx4 {vL16}, {sW}, {sT[0]} offen offset:{1024*k} sc1 lds", tag=f"h{t>>1}")
hdma(0); hdma(1)
STL=144
for k in range(16):
    if k%4==0 and k: E(f"s_add_u32 {sSB}, {sSB}, 4096")
    E(f"buffer_load_dword v{STL+k}, v7, {sW}, {sSB} offen offset:{1024*(k&3)} sc1", tag="st")
for t in range(2,8): hdma(t)
A3=52; BR=100; NB=8; T3=132
def acc3(p,tt,m): return A3+24*(p&1)+12*tt+4*m
def WDf(n):
    return a(192+4*n,4) if n<16 else v(144+4*(n-16),4)
E.wait_vm("h0"); E("s_barrier")
stamp()
fr3=[(p,k,tt) for p in range(4) for k in range(16) for tt in range(2)]
HBV=[12,13,14,15]
for p in range(4): E(f"v_add_u32 v{HBV[p]}, {32768*p}, {vL16}")
def rd3(n):
    p,k,tt=fr3[n]
    E(f"ds_read_b128 {v(BR+4*(n%NB),4)}, v{HBV[p]} offset:{tt*16384+k*1024}", tag=f"b{n}")
PD=5
for n in range(PD): rd3(n)
fill=[]
def Q(t,**kw): fill.append(lambda: E(t,**kw))
def skipq(n=1):
    for _ in range(n): fill.append(lambda: None)
LOG2E=1.4426950408889634
def epilogue(p):
    vM,vK=T3,T3+1
    Q(f"ds_read_b32 v{vM}, v10 offset:{128*p}", tag="es"); Q(f"ds_read_b32 v{vK}, v10 offset:{128*p+512}", tag="es")
    for m in range(3):
        for r in range(4): Q(f"v_permlane32_swap_b32 v{acc3(p,0,m)+r}, v{acc3(p,1,m)+r}")
    fill.append(lambda: E.wait_lg("es"))
    Q(f"v_mul_f32 v{vM}, {fbits(-1/512)}, v{vM}"); Q(f"v_mov_b32 v{T3+2}, {fbits(1e-5)}")
    Q(f"v_fmamk_f32 v{vK}, v{vK}, {fbits(1/512)}, v{T3+2}"); Q(f"v_fma_f32 v{vK}, -v{vM}, v{vM}, v{vK}"); Q(f"v_max_f32 v{vK}, v{vK}, v{T3+2}")
    Q(f"v_rsq_f32 v{vK}, v{vK}");
    els=[(m,r) for m in range(3) for r in range(4)]
    for (m,r) in els[:2]:
        Q(f"v_fmac_f32 v{acc3(p,0,m)+r}, v{vM}, v{CS+4*m+r}")
    Q(f"v_mul_f32 v{vK}, {fbits(-LOG2E)}, v{vK}")
    PK=T3+6
    def pk(m,j): return PK+4+j if m==0 else PK+2*(m-1)+j
    for gi in range(6):
        e2=els[2*gi:2*gi+2]; t=[T3+2+2*(gi&1),T3+3+2*(gi&1)]
        for x,(m,r) in enumerate(e2): Q(f"v_mul_f32 v{t[x]}, v{acc3(p,0,m)+r}, v{vK}")
        for x,(m,r) in enumerate(e2): Q(f"v_exp_f32 v{t[x]}, v{t[x]}")
        for x,(m,r) in enumerate(e2): Q(f"v_fmac_f32 v{acc3(p,1,m)+r}, v{vM}, v{CS+12+4*m+r}")
        for x,(m,r) in enumerate(e2): Q(f"v_add_f32 v{t[x]}, 1.0, v{t[x]}")
        for x,(m,r) in enumerate(e2): Q(f"v_rcp_f32 v{t[x]}, v{t[x]}")
        for x,(m,r) in enumerate(e2): Q(f"v_mul_f32 v{acc3(p,1,m)+r}, v{acc3(p,1,m)+r}, v{acc3(p,0,m)+r}")
        for (m,r) in els[2*gi+2:2*gi+4]: Q(f"v_fmac_f32 v{acc3(p,0,m)+r}, v{vM}, v{CS+4*m+r}")
        for x,(m,r) in enumerate(e2): Q(f"v_mul_f32 v{t[x]}, v{t[x]}, v{acc3(p,1,m)+r}")
        m=e2[0][0]; Q(f"v_cvt_pk_bf16_f32 v{pk(m,gi&1)}, v{t[0]}, v{t[1]}")
        if gi==1:
            Q(f"s_add_u32 {sT[1]}, {sAS}, {2*p*ACT_T}")
            Q(f"buffer_store_dwordx2 {v(PK+4,2)}, v8, {sW}, {sT[1]} offen sc1", tag="ast")
    Q(f"buffer_store_dwordx4 {v(PK,4)}, v9, {sW}, {sT[1]} offen sc1", tag="ast")
assert (T3+6)%2==0
wdn=[0]
def wd_loads(cnt):
    for _ in range(cnt):
        n=wdn[0]
        if n>=44: return
        if n%4==0: Q(f"s_add_u32 {sT[2]}, {sWDS}, {(n//4)*4096}")
        Q(f"buffer_load_dwordx4 {WDf(n)}, {vL16}, {sW}, {sT[2]} offen offset:{1024*(n&3)} sc1", tag="wd")
        wdn[0]+=1
for n in range(128):
    p,k,tt=fr3[n]
    if k==0 and tt==0:
        assert not fill, len(fill)
        if p==0:
            skipq(20)
            fill.append(lambda: E.wait_vm("st"))
            for s_ in (8,4,2,1):
                for j in range(s_): Q(f"v_add_f32 v{STL+j}, v{STL+j}, v{STL+s_+j}")
            Q(f"ds_write_b32 v11, v{STL}", tag="stw")
            wd_loads(16)
        else:
            skipq(6); epilogue(p-1); wd_loads(14)
    E.wait_lg(f"b{n}")
    for m in range(3):
        d=acc3(p,tt,m)
        E(f"v_mfma_f32_16x16x32_bf16 {v(d,4)}, {a(Wf(k,m),4)}, {v(BR+4*(n%NB),4)}, {v(d,4) if k else '0'}")
        for _ in range(2 if m<2 else 1):
            if fill: fill.pop(0)()
    nn=n+PD
    if nn<128:
        if fr3[nn][1:]==(0,0):
            E.wait_lg("stw"); E.wait_vm(f"h{fr3[nn][0]}"); E("s_barrier")
        rd3(nn)
    if (k,tt)==(15,1):
        while fill: fill.pop(0)()
stamp()
epilogue(3)
while fill: fill.pop(0)()
assert wdn[0]==44
stamp()
E.wait_vm0(); E("s_barrier")
E(f"s_lshl_b32 {sT[0]}, {sGA}, 8"); E(f"s_add_u32 {sT[0]}, {sT[0]}, {80*CSTR}"); E(f"v_mov_b32 v6, {sT[0]}")
signal("v6")
stamp()
HR=12
E(f"s_lshl_b32 {sT[0]}, {sCLS}, 2"); E(f"s_add_u32 {sT[0]}, {sT[0]}, {sWV}")
E(f"s_lshl_b32 {sT[1]}, {sT[0]}, 6"); E(f"s_add_u32 {sT[1]}, {sT[1]}, {LST}"); E(f"v_lshl_add_u32 v5, {vI}, 2, {sT[1]}")
E("ds_read_b32 v10, v5"); E("ds_read_b32 v11, v5 offset:512")
E(f"s_lshl_b32 {sT[1]}, {sGA}, 17"); E(f"s_lshl_b32 {sT[2]}, {sT[0]}, 14"); E(f"s_add_u32 {sT[1]}, {sT[1]}, {sT[2]}"); E(f"s_add_u32 {sT[1]}, {sT[1]}, {HOFF}")
E(f"s_lshl_b32 {sT[2]}, {sJB}, 6"); E(f"v_lshl_add_u32 v7, {vG}, 4, {sT[2]}")
E(f"s_cmp_ge_u32 {sJB}, 4"); E(f"s_cselect_b32 {sT[3]}, -1, 0"); E(f"s_cselect_b32 {sT[4]}, 8192, 0"); E(f"s_add_u32 {sT[1]}, {sT[1]}, {sT[4]}")
for j in range(16):
    E(f"v_add_u32 v5, {j}, v7"); E(f"v_xor_b32 v5, {sT[3]}, v5"); E(f"v_subrev_u32 v5, {sT[3]}, v5")
    E("v_bfe_u32 v8, v5, 6, 2"); E("v_lshlrev_b32 v8, 11, v8"); E("v_bfe_u32 v9, v5, 1, 1"); E("v_lshl_add_u32 v8, v9, 10, v8")
    E("v_bfe_u32 v9, v5, 4, 2"); E("v_lshl_add_u32 v8, v9, 8, v8"); E("v_and_b32 v9, 1, v5"); E("v_lshl_add_u32 v8, v9, 3, v8")
    E("v_bfe_u32 v9, v5, 2, 2"); E("v_lshl_add_u32 v8, v9, 1, v8"); E(f"v_lshl_add_u32 v8, {vI}, 4, v8")
    E(f"v_mov_b32 v{HR+j}, 0")
    E(f"buffer_load_short_d16_hi v{HR+j}, v8, {sW}, {sT[1]} offen sc1", tag="hr")
E.wait_lg0()
E(f"v_mul_f32 v10, {fbits(1/512)}, v10"); E(f"v_mov_b32 v5, {fbits(1e-5)}"); E(f"v_fmamk_f32 v11, v11, {fbits(1/512)}, v5"); E("v_fma_f32 v11, -v10, v10, v11"); E("v_max_f32 v11, v11, v5")
E("v_rcp_f32 v11, v11")
E(f"s_lshl_b32 {sT[0]}, {sWV}, 4"); E(f"v_add_u32 v5, {sT[0]}, {vI}"); E(f"v_lshl_add_u32 v5, v5, 5, {sT1}"); E("v_lshlrev_b32 v5, 10, v5"); E("v_lshl_add_u32 v10, v7, 1, v5")
E(f"s_mul_i32 {sT[0]}, {sGA}, {ACT_G}"); E(f"s_mul_i32 {sT[1]}, {sCLS}, {4*ACT_T}"); E(f"s_add_u32 {sT[0]}, {sT[0]}, {sT[1]}"); E(f"s_mul_i32 {sT[1]}, {sWV}, {11*1024}")
E(f"s_add_u32 {sT[0]}, {sT[0]}, {sT[1]}"); E(f"s_add_u32 {sT[0]}, {sT[0]}, {ACTOFF}")
order=[1,2,3,0]
for x,n_ in enumerate(order):
    E(f"s_add_u32 {sT[1]}, {sWV}, {n_}"); E(f"s_and_b32 {sT[1]}, {sT[1]}, 3")
    if n_:
        E(f"s_mul_i32 {sT[6]}, {sT[1]}, 12288"); E(f"s_add_u32 {sT[6]}, {sT[6]}, {(n_-1)*4096}"); E(f"v_add_u32 v{139+n_}, {sT[6]}, {vL16}")
    E(f"s_mul_i32 {sT[1]}, {sT[1]}, {ACT_T}"); E(f"s_add_u32 {sT[2+x]}, {sT[0]}, {sT[1]}")
E(f"s_mul_i32 {sT[6]}, {sWV}, 12288"); E(f"v_add_u32 v143, {sT[6]}, {vL16}")
E(f"v_add_u32 v8, 4096, {vL16}"); E(f"v_add_u32 v9, 8192, {vL16}")
stamp()
poll("v6", sW, 16)
stamp()
for x in range(4):
    for kk in range(11):
        E(f"buffer_load_dwordx4 {a((x*11+kk)*4,4)}, {[vL16,'v8','v9'][kk>>2]}, {sW}, {sT[2+x]} offen offset:{1024*(kk&3)} sc1", tag=f"a{x}_{kk}")
A4=28; PR=92
fill=[]
for x in range(4):
    for kk in range(11):
        E.wait_vm(f"a{x}_{kk}")
        if kk==10:
            while fill: fill.pop(0)()
            Lk=E.newlabel(); E(f"s_cmp_eq_u32 {sWV}, 3"); E(f"s_cbranch_scc1 {Lk}")
        for m in range(4):
            d=A4+16*x+4*m
            E(f"v_mfma_f32_16x16x32_bf16 {v(d,4)}, {WDf(kk*4+m)}, {a((x*11+kk)*4,4)}, {v(d,4) if kk else '0'}")
            if fill and kk<10: fill.pop(0)()
        if kk==10: E.label(Lk)
    if x<3:
        skipq(8)
        for m in range(4): Q(f"ds_write_b128 v{140+x}, {v(A4+16*x+4*m,4)} offset:{1024*m}", tag="pw")
    if x==2:
        skipq(6)
        def bar(): E.wait_lg0(); E("s_barrier")
        fill.append(bar)
        for j in range(12): Q(f"ds_read_b128 {v(PR+4*j,4)}, v143 offset:{1024*j}", tag="pr")
stamp()
E.wait_lg0()
for j in range(16): E(f"v_add_f32 v{PR+j}, v{PR+j}, v{PR+16+j}")
for j in range(16): E(f"v_add_f32 v{PR+j}, v{PR+j}, v{PR+32+j}")
for j in range(16): E(f"v_add_f32 v{PR+j}, v{PR+j}, v{A4+48+j}")
for j in range(16):
    r,m=j>>2,j&3
    E(f"v_fmac_f32 v{HR+j}, v{PR+4*m+r}, v11")
for j in range(8): E(f"v_cvt_pk_bf16_f32 v{A4+j}, v{HR+2*j}, v{HR+2*j+1}")
E(f"buffer_store_dwordx4 {v(A4,4)}, v10, {sO}, 0 offen"); E(f"buffer_store_dwordx4 {v(A4+4,4)}, v10, {sO}, 0 offen offset:16")
if STAMPS:
    E.wait_vm0(); stamp()
    ns=nst[0]
    E(f"s_cmp_lg_u32 {sWV}, 0"); E("s_cbranch_scc1 Lend")
    E(f"s_mul_i32 {sT[0]}, s2, {ns*8}"); E(f"s_add_u32 {sT[0]}, {sT[0]}, {STAMPOFF}"); E("v_mov_b32 v5, 0"); E("s_mov_b64 exec, 1")
    for i in range(ns):
        r=5+i if i else 98
        E(f"v_mov_b32 v6, s{r}"); E(f"v_mov_b32 v7, 0"); E(f"buffer_store_dwordx2 v[6:7], v5, {sW}, {sT[0]} offen offset:{8*i}")
    print("nstamps",ns)
E.label("Lend"); E("s_endpgm")

hdr=open("cdna_kernels/"+NAME+".s.ref").read().split("; Override")[0]
txt=hdr+f"; @launch grid=(256,1,1) block=(256,1,1) lds={LDS_TOTAL}\n"
txt+=f""".amdgcn_target "amdgcn-amd-amdhsa--gfx950"
.text
.globl {NAME}_kernel
.p2align 8
.type {NAME}_kernel,@function
{NAME}_kernel:
"""+E.text()+f""".section .rodata,"a"
.p2align 6
.amdhsa_kernel {NAME}_kernel
  .amdhsa_next_free_vgpr 512
  .amdhsa_next_free_sgpr 102
  .amdhsa_accum_offset 256
  .amdhsa_group_segment_fixed_size 0
  .amdhsa_kernarg_size 96
  .amdhsa_user_sgpr_count 2
  .amdhsa_user_sgpr_kernarg_segment_ptr 1
  .amdhsa_system_sgpr_workgroup_id_x 1
.end_amdhsa_kernel
"""
open(OUT,"w").write(txt)
print("lines",len(E.lines),"nops",E.nnops)
```

```python
import sys, struct
from emit import Em
from asmlib import NAME
STAMPS = "--stamps" in sys.argv
OPT = {a[2:].split("=")[0]: (a.split("=")[1] if "=" in a else "1") for a in sys.argv[1:] if a.startswith("--")}
OUT = [a for a in sys.argv[1:] if not a.startswith("--")]
OUT = OUT[0] if OUT else "k.s"
def opt(k, d): return type(d)(OPT.get(k, d))
def fbits(x): return "0x%08x"%struct.unpack("<I",struct.pack("<f",x))[0]

CSTR=256
UOFF=0x100000; HOFF=0x300000; STOFF=0x500000; RSOFF=0x540000; WDOFF=0x580000; ACTOFF=0x700000; STAMPOFF=0xD00000
ACT_T=49152; ACT_G=8*ACT_T
SLOT=24640; UPO=12288+32
LSLOT=[32768+i*SLOT for i in range(5)]
LMISC=32768+5*SLOT
LPART=LMISC; LRT=LMISC+4608
LU=LSLOT[2]
LSP=131072
LST=LSP+4096
CHUNK_SLOT=[LSLOT[0],LSLOT[1],LSLOT[2],LSLOT[3],LSLOT[4], 0, LSLOT[0], LSLOT[1]]
LDS_TOTAL=163840
sX,sG,sU,sD,sO,sW,sB = [f"s[{28+4*i}:{31+4*i}]" for i in range(7)]
sWV,sS2,sQ,sGA,sMU,sT1,sJB,sCLS = [f"s{64+i}" for i in range(8)]
sT=[f"s{72+i}" for i in range(8)]
sWD,sWM,sWL,sJOB,sUS,sGW,sHS,sSS,sHB,sW4,sSB,sAS,sWDS,sCB,sG3,sJ = [f"s{80+i}" for i in range(16)]
sONE="s3"
def v(i,n=1): return f"v{i}" if n==1 else f"v[{i}:{i+n-1}]"
def a(i,n=1): return f"a{i}" if n==1 else f"a[{i}:{i+n-1}]"
vL,vI,vG,vL16="v1","v2","v3","v4"
E=Em()
nst=[0]; snames=["start"]
def stamp(name):
    if STAMPS:
        i=nst[0]
        E.wait_lg0(); E(f"{'s_memtime' if opt('cyc',0) else 's_memrealtime'} s[100:101]"); E("s_waitcnt lgkmcnt(0)"); E(f"s_mov_b32 s{5+i if i<23 else 56+i-23}, s100")
    nst[0]+=1; snames.append(name)
POLL_LIMIT=0x20000
def poll(vaddr, srd, target, vtmp="v5"):
    skip=E.newlabel(); loop=E.newlabel()
    E(f"s_cmp_lg_u32 {sWV}, 0"); E(f"s_cbranch_scc1 {skip}")
    st=E.save()
    E(f"s_mov_b32 {sT[7]}, {POLL_LIMIT}")
    E.label(loop)
    E(f"buffer_load_dword {vtmp}, {vaddr}, {srd}, 0 offen sc1")
    E("s_waitcnt vmcnt(0)")
    E(f"v_cmp_ne_u32 vcc, {target}, {vtmp}")
    E(f"s_cbranch_vccz {skip}")
    E(f"s_sub_u32 {sT[7]}, {sT[7]}, 1"); E(f"s_cbranch_scc0 {loop}")
    E.restore(st); E.label(skip); E.hist=[]
    E("s_barrier")
def signal(vaddr):
    Ls=E.newlabel()
    E(f"s_cmp_lg_u32 {sWV}, 0"); E(f"s_cbranch_scc1 {Ls}")
    E("v_mov_b32 v5, 1"); E("s_mov_b64 exec, 1")
    E(f"buffer_atomic_add v5, {vaddr}, {sW}, 0 offen", tag="sig", optional=True); E("s_mov_b64 exec, -1")
    E.label(Ls); E.hist=[]
fill=[]
def Q(t,**kw): fill.append(lambda: E(t,**kw))
def QF(f): fill.append(f)
def skipq(n=1):
    for _ in range(n): fill.append(lambda: None)
def pop(n=1):
    for _ in range(n):
        if fill: fill.pop(0)()
def drain():
    while fill: fill.pop(0)()
def classof(dst, ga, cls, tmp):
    E(f"s_sub_u32 {tmp}, 32, {ga}"); E(f"s_cmp_eq_u32 {ga}, 0"); E(f"s_cselect_b32 {tmp}, 16, {tmp}")
    E(f"s_cmp_eq_u32 {cls}, 0"); E(f"s_cselect_b32 {dst}, {ga}, {tmp}")
def sincos_frag(vf, vbase, mults, dcos, dsin, t=10):
    for j in range(4):
        for hh in range(2):
            m=mults[2*j+hh]
            E(f"v_fmamk_f32 v{t+hh}, {vf}, {fbits(m)}, {vbase}")
        E(f"v_cos_f32 v{t+2}, v{t}"); E(f"v_cos_f32 v{t+3}, v{t+1}"); E(f"v_sin_f32 v{t+4}, v{t}"); E(f"v_sin_f32 v{t+5}, v{t+1}")
        E(f"v_cvt_pk_bf16_f32 v{dcos+j}, v{t+2}, v{t+3}"); E(f"v_cvt_pk_bf16_f32 v{dsin+j}, v{t+4}, v{t+5}")

if STAMPS: E(f"{'s_memtime' if opt('cyc',0) else 's_memrealtime'} s[98:99]")
nst[0]=1
E("s_cmp_ge_u32 s2, 256"); E("s_cbranch_scc1 Lend")
E("s_load_dwordx2 s[4:5], s[0:1], 0"); E("s_load_dwordx4 s[16:19], s[0:1], 48"); E("s_load_dwordx8 s[20:27], s[0:1], 64")
E("v_lshrrev_b32 v5, 6, v0"); E(f"v_and_b32 {vL}, 63, v0"); E(f"v_readfirstlane_b32 {sWV}, v5")
E(f"v_and_b32 {vI}, 15, v0"); E(f"v_lshrrev_b32 {vG}, 4, {vL}"); E(f"v_lshlrev_b32 {vL16}, 4, {vL}")
E(f"s_mov_b32 {sONE}, 0x3f803f80")
E(f"s_lshr_b32 {sJ}, s2, 3"); E(f"s_and_b32 {sQ}, {sJ}, 3")
E(f"s_and_b32 {sT[0]}, s2, 7"); E(f"s_bfe_u32 {sT[1]}, s2, 0x10005"); E(f"s_lshl_b32 {sT[1]}, {sT[1]}, 3"); E(f"s_add_u32 {sT[0]}, {sT[0]}, {sT[1]}")
E(f"s_bfe_u32 {sT[1]}, s2, 0x10006"); classof(sS2, sT[0], sT[1], sT[2])
E(f"s_lshr_b32 {sT[1]}, s2, 7"); E(f"s_lshl_b32 {sT[1]}, {sT[1]}, 5"); E(f"s_add_u32 {sS2}, {sS2}, {sT[1]}")
E(f"s_and_b32 {sT[0]}, {sWV}, 1"); E(f"s_lshl_b32 {sT[0]}, {sT[0]}, 7"); E(f"v_xor_b32 v6, {sT[0]}, {vL16}")
E(f"s_lshl_b32 {sT[2]}, {sWV}, 19"); E(f"s_lshl_b32 {sT[3]}, {sS2}, 10"); E(f"s_add_u32 {sT[2]}, {sT[2]}, {sT[3]}")
E(f"s_lshl_b32 {sT[3]}, {sWV}, 13")
E(f"s_and_b32 {sCB}, s2, 3"); E(f"s_lshl_b32 {sCB}, {sCB}, 2"); E(f"s_add_u32 {sCB}, {sCB}, {sQ}")
E(f"s_lshl_b32 {sGW}, s2, 2"); E(f"s_add_u32 {sGW}, {sGW}, {sWV}")
def srd(base, lo, size):
    E(f"s_mov_b32 s{base}, s{lo}"); E(f"s_and_b32 s{base+1}, s{lo+1}, 0xffff"); E(f"s_mov_b32 s{base+2}, {size}"); E(f"s_mov_b32 s{base+3}, 0x20000")
E("s_waitcnt lgkmcnt(0)")
srd(28,4,2097152); srd(48,26,0x1000000)
Lnz=E.newlabel()
E(f"s_cmp_lg_u32 {sGW}, 2"); E(f"s_cbranch_scc1 {Lnz}")
E(f"v_lshlrev_b32 v9, 8, {vL}"); E("v_mov_b32 v10, 0"); E(f"s_mov_b32 {sT[5]}, {64*CSTR}")
E(f"buffer_store_dword v10, v9, {sW}, 0 offen sc1", tag="zero", optional=True)
E(f"buffer_store_dword v10, v9, {sW}, {sT[5]} offen sc1", tag="zero", optional=True)
E.label(Lnz); E.hist=[]
for k in range(8):
    E(f"s_mov_b32 m0, {sT[3]}")
    if k: E(f"v_xor_b32 v5, {k<<4}, v6")
    E(f"buffer_load_dwordx4 {'v5' if k else 'v6'}, {sX}, {sT[2]} offen lds", tag="x")
    if k<7: E(f"s_add_u32 {sT[3]}, {sT[3]}, 1024"); E(f"s_add_u32 {sT[2]}, {sT[2]}, 65536")
srd(32,16,1409024); srd(36,18,1409024)
E(f"s_lshr_b32 {sT[0]}, {sJ}, 2"); E(f"s_mul_i32 {sT[0]}, {sT[0]}, {64*2752}"); E(f"s_mul_i32 {sT[1]}, {sCB}, 192"); E(f"s_add_u32 {sT[0]}, {sT[0]}, {sT[1]}")
E(f"s_lshr_b32 {sT[2]}, {sWV}, 1"); E(f"s_mul_i32 {sT[2]}, {sT[2]}, 188"); E(f"s_add_u32 {sT[0]}, {sT[0]}, {sT[2]}")
E(f"v_mul_u32_u24 v5, 2752, {vL}")
Lu=E.newlabel(); Lv=E.newlabel()
E(f"s_bitcmp1_b32 {sWV}, 0"); E(f"s_cbranch_scc1 {Lu}")
E(f"buffer_load_dword v27, v5, {sG}, {sT[0]} offen", tag="pf"); E(f"s_branch {Lv}")
E.label(Lu); E(f"buffer_load_dword v27, v5, {sU}, {sT[0]} offen", tag="pf2", optional=True); E.label(Lv); E.hist=[]
E(f"s_getpc_b64 s[4:5]"); E.label("Lpc")
E(f"v_and_b32 v5, 1, {vL}"); E(f"s_lshl_b32 {sT[0]}, {sJ}, 2"); E(f"s_add_u32 {sT[0]}, {sT[0]}, {sWV}"); E(f"s_lshl_b32 {sT[0]}, {sT[0]}, 8")
E(f"v_lshl_add_u32 v5, v5, 7, {sT[0]}"); E(f"v_min_u32 v5, Lend-Lpc, v5")
E(f"global_load_dword v27, v5, s[4:5]", tag="pf")
srd(40,20,1409024); srd(44,22,2097152); srd(52,24,256)
E(f"s_and_b32 {sGA}, s2, 15"); E(f"s_lshr_b32 {sMU}, s2, 4"); E(f"s_and_b32 {sCLS}, {sMU}, 1"); E(f"s_lshr_b32 {sJB}, {sMU}, 1")
classof(sT1, sGA, sCLS, sT[0])
E(f"s_bfe_u32 {sG3}, s2, 0x10002"); E(f"s_lshl_b32 {sG3}, {sG3}, 3"); E(f"s_lshr_b32 {sT[0]}, {sJ}, 2"); E(f"s_add_u32 {sG3}, {sG3}, {sT[0]}")
BC,BS=60,76
E(f"s_lshl_b32 {sT[1]}, {sQ}, 6"); E(f"s_add_u32 {sT[1]}, {sT[1]}, {sWV}")
E(f"v_lshl_add_u32 v7, {vI}, 2, {sT[1]}"); E("v_mov_b32 v8, 256"); E("v_cmp_eq_u32 vcc, 0, v7"); E("v_cndmask_b32 v7, v7, v8, vcc")
E("v_cvt_f32_u32 v7, v7"); E(f"v_cvt_f32_u32 v26, {vG}"); E(f"v_mul_f32 v7, {fbits(-1/512)}, v7"); E("v_mul_f32 v8, v7, v26"); E(f"v_mul_f32 v8, {fbits(8.0)}, v8")
for k in range(4): sincos_frag("v7","v8",[32*k+s_ for s_ in range(8)],BC+4*k,BS+4*k)
G=92
def Gf(tau,j): return G+16*tau+4*j
E(f"s_bitcmp1_b32 {sS2}, 3"); E(f"s_cselect_b32 {sT[0]}, 0xbe800000, 0"); E(f"s_cselect_b32 {sT[1]}, 0x80008000, 0"); E(f"s_cselect_b32 {sT[2]}, 0, 0x80008000")
E(f"v_lshlrev_b32 v5, 8, {vG}"); E(f"v_add_u32 v5, {sS2}, v5"); E("v_cvt_f32_u32 v5, v5"); E("v_mul_f32 v5, 0x3a000000, v5")
def gen_G():
    for tau in range(2):
        E(f"v_add_u32 v8, {16*tau}, {vI}"); E("v_cvt_f32_u32 v8, v8")
        E(f"v_mov_b32 v9, {sT[0]}"); E("v_fmac_f32 v9, v8, v5")
        sincos_frag("v8","v9",[((s_&3)+16*(s_>>2))/32.0 for s_ in range(8)],Gf(tau,0),Gf(tau,1))
        for j in range(4):
            E(f"v_xor_b32 v{Gf(tau,2)+j}, {sT[1]}, v{Gf(tau,1)+j}"); E(f"v_xor_b32 v{Gf(tau,3)+j}, {sT[2]}, v{Gf(tau,0)+j}")
gen_G()
for k in range(3):
    E(f"v_add_u32 v5, {64*k}, {vL}"); E(f"v_mul_u32_u24 v8, 0x1556, v5"); E("v_lshrrev_b32 v8, 16, v8")
    E(f"v_mul_u32_u24 v10, 12, v8"); E("v_sub_u32 v5, v5, v10"); E("v_lshlrev_b32 v5, 4, v5")
    E(f"v_mul_u32_u24 v8, {4*2752}, v8")
    E(f"v_add_u32 v{16+k}, v8, v5")
    E(f"v_sub_u32 v{19+k}, v5, v8"); E(f"v_add_u32 v{19+k}, {60*2752}, v{19+k}")
E(f"v_add_u32 v22, {256*2752}, v19"); E(f"s_cmp_eq_u32 {sWV}, 0"); E(f"s_cselect_b32 {sT[0]}, 12, 0")
E(f"v_cmp_gt_u32 vcc, {sT[0]}, {vL}"); E("v_cndmask_b32 v22, v22, v19, vcc")
E(f"s_mul_i32 {sT[0]}, {sCB}, 192"); E(f"s_mul_i32 {sT[1]}, {sWV}, 2752")
E(f"s_add_u32 {sWD}, {sT[0]}, {sT[1]}"); E(f"s_sub_u32 {sWM}, {sT[0]}, {sT[1]}"); E(f"s_add_u32 {sWM}, {sWM}, {452*2752}")
E(f"s_mul_i32 {sWL}, {sWV}, 3072")
def wchunk_items(c):
    slot=CHUNK_SLOT[c]; items=[]
    for mi,(S,o) in enumerate(((sG,0),(sU,UPO))):
        for k in range(3):
            def f(mi=mi,S=S,o=o,k=k):
                if mi==0 and k==0:
                    if c<4: E(f"s_add_u32 {sT[5]}, {sWD}, {64*c*2752}")
                    else:   E(f"s_sub_u32 {sT[5]}, {sWM}, {64*(c-4)*2752}")
                    if c==4: E(f"s_sub_u32 {sT[6]}, {sT[5]}, {256*2752}")
                E(f"s_add_u32 m0, {sWL}, {slot+o+1024*k}")
                vo=f"v{16+k}" if c<4 else f"v{19+k}"; so=sT[5]
                if c==4 and k==0: vo="v22"; so=sT[6]
                E(f"buffer_load_dwordx4 {vo}, {S}, {so} offen lds", tag=f"w{c}")
            items.append(f)
    return items
def wchunk(c):
    for f in wchunk_items(c): f()
RP=220
E(f"s_mov_b32 {sJOB}, 999"); E(f"s_cmp_eq_u32 {sWV}, 1"); E(f"s_cselect_b32 {sJOB}, s2, {sJOB}")
E(f"s_add_u32 {sT[0]}, s2, 256"); E(f"s_cmp_eq_u32 {sWV}, 3"); E(f"s_cselect_b32 {sJOB}, {sT[0]}, {sJOB}")
E(f"s_lshr_b32 {sT[0]}, {sJOB}, 3"); E(f"s_lshl_b32 {sT[0]}, {sT[0]}, 2"); E(f"v_add_u32 v5, {sT[0]}, {vG}")
E("v_mul_u32_u24 v8, 0x5556, v5"); E("v_lshrrev_b32 v8, 16, v8")
E("v_mul_u32_u24 v10, 3, v8"); E("v_sub_u32 v5, v5, v10"); E("v_mul_u32_u24 v8, 24, v8")
E("v_lshlrev_b32 v10, 2, v5"); E("v_add_u32 v10, 4, v10"); E("v_cmp_eq_u32 vcc, 0, v5"); E("v_cndmask_b32 v10, v10, v5, vcc")
E("v_add_u32 v8, v8, v10"); E("v_mov_b32 v10, 8"); E("v_cndmask_b32 v10, v10, 4, vcc") ; E("v_add_u32 v10, v8, v10")
E(f"v_lshlrev_b32 v5, 3, {vI}"); E("v_lshl_add_u32 v24, v8, 10, v5"); E("v_lshl_add_u32 v25, v10, 10, v5")
Lnr=E.newlabel()
E(f"s_cmp_ge_u32 {sJOB}, 344"); E(f"s_cbranch_scc1 {Lnr}")
E(f"s_and_b32 {sT[0]}, {sJOB}, 7"); E(f"s_lshl_b32 {sT[0]}, {sT[0]}, 7")
for s_ in range(8):
    E(f"buffer_load_dwordx2 {v(RP+2*s_,2)}, {'v24' if s_<4 else 'v25'}, {sD}, {sT[0]} offen offset:{1024*(s_&3)}", tag="rp", optional=True)
E.label(Lnr); E.hist=[]
E(f"v_xor_b32 v5, {vG}, {vI}"); E("v_lshlrev_b32 v5, 4, v5"); E(f"v_lshl_add_u32 v8, {vI}, 10, v5")
for k in range(1,4): E(f"v_xor_b32 v{8+k}, {k<<6}, v8")
E(f"s_lshl_b32 {sT[0]}, {sWV}, 5"); E(f"s_add_u32 {sT[0]}, {sT[0]}, {LPART}"); E(f"v_mul_u32_u24 v12, 144, {vI}"); E(f"v_lshl_add_u32 v12, {vG}, 3, v12"); E(f"v_add_u32 v12, {sT[0]}, v12")
E(f"v_and_b32 v5, 31, {vL}"); E("v_mul_u32_u24 v13, 144, v5"); E(f"v_and_b32 v6, 32, {vL}"); E("v_lshl_add_u32 v13, v6, 1, v13"); E(f"v_add_u32 v13, {LPART}, v13")
E(f"s_lshl_b32 {sT[0]}, {sWV}, 7"); E(f"s_add_u32 {sT[0]}, {sT[0]}, {LRT}"); E(f"v_lshl_add_u32 v14, v5, 2, {sT[0]}"); E(f"v_lshl_add_u32 v15, {vG}, 4, {sT[0]}")
E(f"v_lshlrev_b32 v7, 16, {vI}"); E(f"v_lshl_add_u32 v7, {vG}, 4, v7")
E(f"s_lshr_b32 {sT[0]}, {sWV}, 1"); E(f"s_lshl_b32 {sT[1]}, {sQ}, 1"); E(f"s_add_u32 {sT[0]}, {sT[0]}, {sT[1]}"); E(f"s_lshl_b32 {sT[0]}, {sT[0]}, 13")
E(f"s_lshl_b32 {sT[1]}, {sS2}, 7"); E(f"s_add_u32 {sT[0]}, {sT[0]}, {sT[1]}")
E(f"s_lshr_b32 {sT[1]}, {sS2}, 1"); E(f"s_xor_b32 {sT[1]}, {sT[1]}, {sWV}"); E(f"s_and_b32 {sT[1]}, {sT[1]}, 1"); E(f"s_lshl_b32 {sT[1]}, {sT[1]}, 6")
E(f"s_add_u32 {sT[0]}, {sT[0]}, {sT[1]}"); E(f"s_add_u32 {sUS}, {sT[0]}, {UOFF}")
stamp("pro")
E.wait_vm("x"); E("s_barrier")
stamp("xland")
Lnz=E.newlabel()
E(f"s_cmp_lg_u32 {sGW}, 2"); E(f"s_cbranch_scc1 {Lnz}")
st=E.save(); E.wait_vm("zero"); E("v_mov_b32 v5, 0"); E("v_mov_b32 v6, 1"); E("s_mov_b64 exec, 1")
E(f"buffer_store_dword v6, v5, {sB}, 0 offen sc1"); E("s_mov_b64 exec, -1"); E.restore(st); E.vm.append(("flag",True))
E.label(Lnz); E.hist=[]
ACC=124; AR=156; NR=16
def acc(name,rho): return ACC+16*rho+4*{"aP":0,"aM":1,"bP":2,"bM":3}[name]
Lj=E.newlabel(); Lw=[E.newlabel() for _ in range(4)]
for w in range(1,4):
    E(f"s_cmp_eq_u32 {sWV}, {w}"); E(f"s_cbranch_scc1 {Lw[w]}")
st0=E.save()
SA=44
for w in range(4):
    E.restore(st0); E.label(Lw[w]); E.hist=[]
    frs=[(b%4,k,rho) for b in range(w,w+4) for k in range(4) for rho in range(2)]
    used=set()
    def rd(n):
        b,k,rho=frs[n]
        E(f"ds_read_b128 {v(AR+4*(n%NR),4)}, v{8+k} offset:{rho*16384+b*256}", tag=f"f{n}")
    for n in range(12): rd(n)
    for j in range(4): E(f"v_mov_b32 v{SA+j}, 0")
    wq=wchunk_items(0)+wchunk_items(1)
    for f in wq[:4]: f()
    wq=wq[4:]
    for n in range(32):
        b,k,rho=frs[n]; p=(w*b)&3; fr=AR+4*(n%NR)
        E.wait_lg(f"f{n}")
        for (B,names) in ((BC,("aP","bM","aM","bP")),(BS,("bP","aP","bM","aM"))):
            d=acc(names[p],rho); c=v(d,4) if (names[p],rho) in used else "0"; used.add((names[p],rho))
            E(f"v_mfma_f32_16x16x32_bf16 {v(d,4)}, {v(fr,4)}, {v(B+4*k,4)}, {c}")
            if n<8:
                for j in (0,1) if B==BC else (2,3):
                    E(f"v_dot2c_f32_bf16 v{SA+2*rho}, {sONE}, v{fr+j}"); E(f"v_dot2c_f32_bf16 v{SA+2*rho+1}, v{fr+j}, v{fr+j}")
            else: pop(2)
        if n+12<32: rd(n+12)
        if n%3==2 and n>=8 and wq: wq.pop(0)()
        if n==7:
            Q(f"ds_write_b64 v12, {v(SA,2)}", tag="sw"); Q(f"ds_write_b64 v12, {v(SA+2,2)} offset:{16*144}", tag="sw")
            skipq(4)
            def bar(): E.wait_lg("sw"); E("s_barrier")
            QF(bar)
            for j in range(4): Q(f"ds_read_b128 {v(SA+4*j,4)}, v13 offset:{16*j}", tag="sr")
            skipq(8)
            QF(lambda: E.wait_lg("sr"))
            for j in range(8): Q(f"v_add_f32 v{SA+j}, v{SA+j}, v{SA+8+j}")
            for j in range(4): Q(f"v_add_f32 v{SA+j}, v{SA+j}, v{SA+4+j}")
            for j in range(2): Q(f"v_add_f32 v{SA+j}, v{SA+j}, v{SA+2+j}")
            Q(f"v_mov_b32 v{SA+2}, v{SA}"); Q(f"v_mov_b32 v{SA+3}, v{SA+1}")
            skipq(2)
            Q(f"v_permlane32_swap_b32 v{SA}, v{SA+2}"); Q(f"v_permlane32_swap_b32 v{SA+1}, v{SA+3}")
            Q(f"v_add_f32 v{SA}, v{SA}, v{SA+2}"); Q(f"v_add_f32 v{SA+1}, v{SA+1}, v{SA+3}")
            Q(f"v_mul_f32 v{SA}, {fbits(1/512)}, v{SA}"); Q(f"v_mov_b32 v{SA+2}, {fbits(1e-5)}")
            Q(f"v_fmamk_f32 v{SA+1}, v{SA+1}, {fbits(1/512)}, v{SA+2}"); Q(f"v_fma_f32 v{SA+1}, -v{SA}, v{SA}, v{SA+1}")
            Q(f"v_max_f32 v{SA+1}, v{SA+1}, v{SA+2}")
            Q(f"v_rsq_f32 v{SA+1}, v{SA+1}"); skipq(1)
            Q(f"ds_write_b32 v14, v{SA+1}", tag="rw")
            Q(f"ds_read_b128 {v(SA+4,4)}, v15", tag="rr"); Q(f"ds_read_b128 {v(SA+8,4)}, v15 offset:64", tag="rr")
    drain()
    assert not wq
    E.wait_lg("rr")
    for (P,M,dst) in (("aP","aM",AR),("bP","bM",AR+4)):
        for rho in range(2):
            for r in range(4):
                x=acc(P,rho)+r
                if (M,rho) in used: E(f"v_sub_f32 v{x}, v{x}, v{acc(M,rho)+r}")
                E(f"v_mul_f32 v{x}, v{x}, v{SA+4+4*rho+r}")
            for j in range(2): E(f"v_cvt_pk_bf16_f32 v{dst+2*rho+j}, v{acc(P,rho)+2*j}, v{acc(P,rho)+2*j+1}")
    if w<3: E(f"s_branch {Lj}")
E.label(Lj); E.hist=[]; E("s_nop 1")
S2A=AR+8
for tau in range(2):
    for part in range(2): E(f"v_mfma_f32_16x16x32_bf16 {v(S2A+8*tau+4*part,4)}, {v(AR,4)}, {v(Gf(tau,2*part),4)}, 0")
for tau in range(2):
    for part in range(2): E(f"v_mfma_f32_16x16x32_bf16 {v(S2A+8*tau+4*part,4)}, {v(AR+4,4)}, {v(Gf(tau,2*part+1),4)}, {v(S2A+8*tau+4*part,4)}")
E("v_mov_b32 v6, 0"); E(f"buffer_load_dword v26, v6, {sB}, 0 offen sc1", tag="rdy")
E(f"s_add_u32 {sT[0]}, {sUS}, 0x100000")
for tau in range(2):
    o=S2A+16+4*tau
    for j in range(4): E(f"v_cvt_pk_bf16_f32 v{o+j}, v{S2A+8*tau+2*j}, v{S2A+8*tau+2*j+1}")
    E(f"buffer_store_dwordx4 {v(o,4)}, v7, {sW}, {sUS if tau==0 else sT[0]} offen sc1", tag="ust")
stamp("ust")
Lnr=E.newlabel()
E(f"s_cmp_ge_u32 {sJOB}, 344"); E(f"s_cbranch_scc1 {Lnr}")
st=E.save()
E.wait_vm("rp")
E(f"s_mov_b32 {sT[0]}, 0x05040100"); E(f"s_mov_b32 {sT[1]}, 0x07060302")
E(f"s_and_b32 {sT[2]}, {sJOB}, 7"); E(f"s_mul_i32 {sT[2]}, {sT[2]}, 43"); E(f"s_lshr_b32 {sT[3]}, {sJOB}, 3"); E(f"s_add_u32 {sT[2]}, {sT[2]}, {sT[3]}")
E(f"s_lshl_b32 {sT[2]}, {sT[2]}, 12"); E(f"s_add_u32 {sT[2]}, {sT[2]}, {WDOFF}")
for m in range(4):
    for j in range(4):
        E(f"v_perm_b32 v{RP+16+4*m+j}, v{RP+2*(2*j+1)+(m>>1)}, v{RP+2*(2*j)+(m>>1)}, {sT[m&1]}")
    E(f"buffer_store_dwordx4 {v(RP+16+4*m,4)}, {vL16}, {sW}, {sT[2]} offen offset:{1024*m} sc1")
E.restore(st); E.label(Lnr); E.hist=[]
E.vm.append(("ust",True))
NP2=opt("np2",8)
wq=wchunk_items(2)+wchunk_items(3)
for f in wq[:NP2]: f()
wq=wq[NP2:]
E.wait_vm("ust"); E("s_barrier")
stamp("B3")
Ls=E.newlabel(); Lr=E.newlabel(); Lr2=E.newlabel()
E(f"s_cmp_lg_u32 {sWV}, 0"); E(f"s_cbranch_scc1 {Ls}")
st=E.save()
E(f"s_mov_b32 {sT[7]}, {POLL_LIMIT}")
E.label(Lr)
E("v_cmp_ne_u32 vcc, 1, v26"); E(f"s_cbranch_vccz {Lr2}")
E(f"buffer_load_dword v26, v6, {sB}, 0 offen sc1"); E("s_waitcnt vmcnt(0)")
E(f"s_sub_u32 {sT[7]}, {sT[7]}, 1"); E(f"s_cbranch_scc0 {Lr}")
E.label(Lr2)
E(f"s_lshl_b32 {sT[0]}, {sQ}, 4"); E(f"s_and_b32 {sT[1]}, s2, 3"); E(f"s_add_u32 {sT[0]}, {sT[0]}, {sT[1]}"); E(f"s_lshl_b32 {sT[0]}, {sT[0]}, 8")
E(f"v_lshlrev_b32 v5, 10, {vL}"); E("v_mov_b32 v6, 1"); E("s_mov_b64 exec, 15")
E(f"buffer_atomic_add v6, v5, {sW}, {sT[0]} offen"); E("s_mov_b64 exec, -1")
E.restore(st); E.vm.append(("sig",True))
E.label(Ls); E.hist=[]
for f in wq: f()
E(f"v_lshrrev_b32 v5, 2, {vL}"); E("v_mul_u32_u24 v23, 192, v5"); E(f"v_and_b32 v5, 1, {vL}"); E("v_lshl_add_u32 v23, v5, 3, v23")
E(f"v_bfe_u32 v5, {vL}, 1, 1"); E(f"v_mul_u32_u24 v5, {UPO}, v5"); E(f"s_mul_i32 {sT[0]}, {sWV}, 48"); E(f"v_add3_u32 v23, v23, v5, {sT[0]}")
E("v_add_u32 v24, 0x10000, v23"); E("v_add_u32 v25, 0x20000, v23")
def Wf(k,m): return (k*3+m)*4
def trchunk(c):
    for kk in range(2):
        for m in range(3):
            for eta in range(2):
                off=CHUNK_SLOT[c]+(kk*2+eta)*3072+16*m
                E(f"ds_read_b64_tr_b16 {a(Wf(2*c+kk,m)+2*eta,2)}, v{23+(off>>16)} offset:{off&0xffff}")
trchunk(0); trchunk(1)
XR=44; XW=112
E(f"s_lshl_b32 {sT[0]}, {sWV}, 4"); E(f"v_add_u32 v8, {sT[0]}, {vI}"); E(f"v_lshl_add_u32 v5, v8, 5, {sT1}")
E(f"s_lshr_b32 {sT[0]}, {sJB}, 1"); E(f"s_lshl_b32 {sT[0]}, {sT[0]}, 7"); E(f"s_and_b32 {sT[1]}, {sJB}, 1"); E(f"s_lshl_b32 {sT[1]}, {sT[1]}, 2"); E(f"s_add_u32 {sT[0]}, {sT[0]}, {sT[1]}")
E(f"v_lshl_add_u32 v6, {vG}, 5, {sT[0]}")
E("v_lshl_add_u32 v9, v5, 10, v6")
E("v_sub_u32 v5, 0x800, v5"); E("v_and_b32 v5, 0x7ff, v5"); E("v_lshlrev_b32 v5, 10, v5"); E("v_sub_u32 v10, v5, v6"); E(f"v_add_u32 v10, {1024-28}, v10")
E("v_cmp_eq_u32 vcc, 0, v6"); E("v_mov_b32 v12, 1.0"); E("v_cndmask_b32 v12, v12, 0, vcc")
E(f"buffer_load_dwordx4 {v(XW,4)}, v9, {sX}, 0 offen", tag="xr"); E(f"buffer_load_dwordx4 {v(XW+4,4)}, v9, {sX}, 0 offen offset:16", tag="xr")
E(f"buffer_load_dwordx4 {v(XW+8,4)}, v10, {sX}, 0 offen", tag="xr"); E(f"buffer_load_dwordx4 {v(XW+12,4)}, v10, {sX}, 0 offen offset:16", tag="xr")
E(f"buffer_load_dword v{XW+16}, v5, {sX}, 0 offen offset:512", tag="xr")
wchunk(4)
F64=28
E("v_cvt_f32_u32 v7, v8"); E(f"v_cvt_f32_u32 v26, {vG}"); E(f"v_mul_f32 v7, {fbits(-1/64)}, v7"); E("v_mul_f32 v13, v7, v26"); E(f"v_mul_f32 v13, {fbits(8.0)}, v13")
for k in range(2): sincos_frag("v7","v13",[32*k+s_ for s_ in range(8)],F64+4*k,F64+8+4*k,t=100)
wchunk(5)
E(f"s_lshl_b32 {sT[0]}, {sCLS}, 6"); E(f"v_add_u32 v13, {sT[0]}, v8")
E(f"s_xor_b32 {sT[1]}, {sT[0]}, 64"); E(f"s_cmp_eq_u32 {sGA}, 0"); E(f"s_cselect_b32 {sT[1]}, {sT[0]}, {sT[1]}")
E(f"s_cmp_eq_u32 {sT1}, 0"); E(f"s_cselect_b32 {sT[2]}, 64, 63")
E(f"v_sub_u32 v14, {sT[2]}, v8"); E("v_and_b32 v14, 63, v14"); E(f"v_add_u32 v14, {sT[1]}, v14")
for (p,d) in ((13,9),(14,10)):
    E(f"v_lshrrev_b32 v5, 4, v{p}"); E(f"v_and_b32 v6, 15, v{p}"); E("v_lshlrev_b32 v5, 14, v5"); E("v_lshl_add_u32 v5, v6, 4, v5"); E(f"v_lshl_add_u32 v{d}, {vG}, 8, v5")
E(f"v_add_u32 v10, 8192, v10")
E(f"s_lshl_b32 {sT[0]}, {sGA}, 17"); E(f"s_lshl_b32 {sT[1]}, {sJB}, 10"); E(f"s_add_u32 {sHS}, {sT[0]}, {sT[1]}"); E(f"s_add_u32 {sHS}, {sHS}, {HOFF}")
E(f"v_cmp_gt_u32 vcc, 32, {vL}"); E("v_add_u32 v14, 2048, v14"); E("v_cndmask_b32 v11, v14, v13, vcc"); E("v_lshlrev_b32 v11, 2, v11")
E(f"v_and_b32 v5, 1, {vG}"); E("v_lshl_add_u32 v11, v5, 9, v11")
E(f"s_lshl_b32 {sT[0]}, {sGA}, 14"); E(f"s_add_u32 {sSS}, {sT[0]}, {sT[1]}"); E(f"s_add_u32 {sSS}, {sSS}, {STOFF}")
E(f"v_bfe_u32 v5, {vL}, 2, 2"); E(f"v_lshl_add_u32 v5, {vG}, 3, v5"); E("v_lshlrev_b32 v13, 7, v5")
E(f"v_bfe_u32 v5, {vL}, 3, 1"); E("v_lshl_add_u32 v13, v5, 6, v13"); E(f"v_and_b32 v5, 3, {vL}"); E("v_lshl_add_u32 v13, v5, 4, v13")
E(f"v_and_b32 v5, 1, {vG}"); E("v_lshl_add_u32 v13, v5, 3, v13")
E("v_xor_b32 v14, 8, v13"); E("v_xor_b32 v15, 64, v13"); E("v_xor_b32 v8, 0x48, v13")
for r_ in (13,14,15,8): E(f"v_add_u32 v{r_}, {LU}, v{r_}")
UB={(0,0):13,(0,1):14,(1,0):15,(1,1):8}
E.wait_vm("xr"); E("s_barrier")
trchunk(2); trchunk(3)
E(f"s_mov_b32 {sT[0]}, 0xffff0000")
for r in range(4):
    E(f"v_lshlrev_b32 v{XR+r}, 16, v{XW+2*r}"); E(f"v_and_b32 v{XR+4+r}, {sT[0]}, v{XW+2*r}")
E(f"v_cmp_eq_f32 vcc, 0, v12"); E(f"v_cndmask_b32 v{XW+15}, v{XW+15}, v{XW+16}, vcc")
for r in range(4):
    E(f"v_lshlrev_b32 v{XR+8+r}, 16, v{XW+8+7-2*r}"); E(f"v_and_b32 v{XR+12+r}, {sT[0]}, v{XW+8+6-2*r}")
E(f"s_lshr_b32 {sT[0]}, {sJB}, 1"); E(f"s_lshl_b32 {sT[0]}, {sT[0]}, 2"); E(f"s_and_b32 {sT[1]}, {sGA}, 3"); E(f"s_add_u32 {sT[0]}, {sT[0]}, {sT[1]}"); E(f"s_lshl_b32 {sT[0]}, {sT[0]}, 10")
E(f"v_and_b32 v6, 3, {vL}"); E(f"v_lshl_add_u32 v6, v6, 8, {sT[0]}")
E(f"s_lshl_b32 {sT[0]}, {sT1}, 3"); E(f"s_add_u32 {sT[0]}, {sT[0]}, {sJB}"); E(f"s_lshl_b32 {sT[0]}, {sT[0]}, 13"); E(f"s_lshl_b32 {sT[1]}, {sWV}, 11")
E(f"s_add_u32 {sT[0]}, {sT[0]}, {sT[1]}"); E(f"s_add_u32 {sT[0]}, {sT[0]}, {UOFF}"); E(f"s_add_u32 m0, {sT[1]}, {LU}")
E(f"s_lshl_b32 {sT[2]}, {sJ}, 2"); E(f"s_add_u32 {sT[2]}, {sT[2]}, {sWV}"); E(f"s_mul_i32 {sT[2]}, {sT[2]}, {86*128}"); E(f"s_add_u32 {sT[2]}, {sT[2]}, {WDOFF}")
E(f"v_min_u32 v26, 42, {vL}"); E(f"v_lshl_add_u32 v26, v26, 7, {sT[2]}")
E.wait_lg0()
stamp("W2")
poll("v6", sW, 16)
stamp("sync1")
E(f"buffer_load_dwordx4 {vL16}, {sW}, {sT[0]} offen sc1 lds", tag="u"); E(f"buffer_load_dwordx4 {vL16}, {sW}, {sT[0]} offen offset:1024 sc1 lds", tag="u")
if opt("wdpf",1): E(f"buffer_load_dword v27, v26, {sW}, 0 offen sc1", tag="pf")
wq=wchunk_items(6)+wchunk_items(7)
for f in wq[:7]: f()
wq=wq[7:]
E.wait_vm("u"); E("s_barrier")
stamp("uland")
UF=60; YA=92
for k in range(4):
    for eta in range(2):
        for hs in range(2):
            E(f"ds_read_b64_tr_b16 {v(UF+(k*2+eta)*4+2*hs,2)}, v{UB[(eta,k>>1)]} offset:{(32*(k&1)+4*hs)*128}", tag=f"u{k}{eta}")
for f in wq[:2]: f()
wq=wq[2:]
for k in range(4):
    for eta in range(2):
        E.wait_lg(f"u{k}{eta}")
        E(f"v_mfma_f32_16x16x32_bf16 {v(YA+4*eta,4)}, {v(UF+(k*2+eta)*4,4)}, {v(F64+4*k,4)}, {v(YA+4*eta,4) if k else '0'}")
for f in wq: f()
HP=100; SS=108
for j in range(4): E(f"v_mov_b32 v{SS+j}, 0")
for j in range(8):
    if j==0: E(f"v_fmac_f32 v{XR}, v{YA}, v12")
    else: E(f"v_add_f32 v{XR+j}, v{XR+j}, v{YA+j}")
for j in range(4): E(f"v_cvt_pk_bf16_f32 v{HP+j}, v{XR+2*j}, v{XR+2*j+1}")
E(f"buffer_store_dwordx4 {v(HP,4)}, v9, {sW}, {sHS} offen sc1")
for j in range(8): E(f"v_add_f32 v{XR+8+j}, v{XR+8+j}, v{YA+j}")
for j in range(4): E(f"v_cvt_pk_bf16_f32 v{HP+4+j}, v{XR+8+2*j}, v{XR+8+2*j+1}")
E(f"buffer_store_dwordx4 {v(HP+4,4)}, v10, {sW}, {sHS} offen sc1")
for j in range(4):
    for h in range(2):
        E(f"v_dot2c_f32_bf16 v{SS+2*h}, {sONE}, v{HP+4*h+j}"); E(f"v_dot2c_f32_bf16 v{SS+2*h+1}, v{HP+4*h+j}, v{HP+4*h+j}")
E(f"v_permlane32_swap_b32 v{SS}, v{SS+2}"); E(f"v_permlane32_swap_b32 v{SS+1}, v{SS+3}")
E(f"v_add_f32 v{SS}, v{SS}, v{SS+2}"); E(f"v_add_f32 v{SS+1}, v{SS+1}, v{SS+3}")
E(f"v_permlane16_swap_b32 v{SS}, v{SS+1}"); E(f"v_add_f32 v{SS}, v{SS}, v{SS+1}")
E(f"buffer_store_dword v{SS}, v11, {sW}, {sSS} offen sc1")
stamp("hst")
trchunk(4); trchunk(5)
E(f"s_lshl_b32 {sT[0]}, {sGA}, 8"); E(f"s_add_u32 {sT[0]}, {sT[0]}, {64*CSTR}"); E(f"v_mov_b32 v6, {sT[0]}")
E.wait_vm0(); E("s_barrier")
signal("v6")
stamp("sig2")
trchunk(6); trchunk(7)
E(f"s_lshl_b32 {sT[0]}, {sG3}, 17"); E(f"s_lshl_b32 {sW4}, {sWV}, 12"); E(f"s_add_u32 {sHB}, {sT[0]}, {sW4}"); E(f"s_add_u32 {sHB}, {sHB}, {HOFF}")
E(f"s_lshl_b32 {sT[0]}, {sG3}, 14"); E(f"s_add_u32 {sSB}, {sT[0]}, {sW4}"); E(f"s_add_u32 {sSB}, {sSB}, {STOFF}")
E(f"v_lshrrev_b32 v5, 1, {vG}"); E(f"v_mul_u32_u24 v5, {ACT_T}, v5"); E(f"v_lshl_add_u32 v5, {vI}, 4, v5"); E(f"v_and_b32 v10, 1, {vG}")
E("v_lshl_add_u32 v8, v10, 3, v5"); E("v_lshl_add_u32 v9, v10, 8, v5"); E("v_add_u32 v9, 256, v9")
E(f"s_mul_i32 {sT[0]}, {sG3}, {ACT_G}"); E(f"s_lshl_b32 {sT[1]}, {sCB}, 2"); E(f"s_add_u32 {sT[1]}, {sT[1]}, {sWV}"); E(f"s_mul_i32 {sT[1]}, {sT[1]}, 768")
E(f"s_add_u32 {sAS}, {sT[0]}, {sT[1]}"); E(f"s_add_u32 {sAS}, {sAS}, {ACTOFF}")
E(f"v_lshrrev_b32 v5, 1, {vG}"); E(f"v_lshl_add_u32 v5, v5, 4, {vI}"); E("v_lshlrev_b32 v5, 3, v5"); E(f"v_add_u32 v10, {LST}, v5")
E("v_lshlrev_b32 v11, 4, v0"); E(f"v_add_u32 v11, {LSP}, v11"); E("v_and_b32 v7, 127, v0"); E("v_lshlrev_b32 v7, 2, v7")
E(f"s_mul_i32 {sT[0]}, {sJB}, 43"); E(f"s_mul_i32 {sT[1]}, {sWV}, 11"); E(f"s_add_u32 {sT[0]}, {sT[0]}, {sT[1]}"); E(f"s_lshl_b32 {sT[0]}, {sT[0]}, 12"); E(f"s_add_u32 {sWDS}, {sT[0]}, {WDOFF}")
E(f"s_lshl_b32 {sT[0]}, {sG3}, 8"); E(f"s_add_u32 {sT[0]}, {sT[0]}, {64*CSTR}"); E(f"v_mov_b32 v6, {sT[0]}")
HBV=[12,13,14,15]
for p in range(4): E(f"v_add_u32 v{HBV[p]}, {32768*p}, {vL16}")
CS=28
for j in range(4): E(f"v_mov_b32 v{60+j}, {sONE}")
E.wait_lg0()
stamp("W4")
poll("v6", sW, 16)
stamp("sync2")
def hdma_items(t):
    items=[]
    for k in range(4):
        def f(k=k):
            if k==0: E(f"s_add_u32 m0, {sW4}, {t*16384}"); E(f"s_add_u32 {sT[0]}, {sHB}, {t*16384}")
            E(f"buffer_load_dwordx4 {vL16}, {sW}, {sT[0]} offen offset:{1024*k} sc1 lds", tag=f"h{t>>1}")
        items.append(f)
    return items
STL=144
vq=[]
for f in hdma_items(0)+hdma_items(1): f()
for k in range(4): vq.append(lambda k=k: E(f"buffer_load_dwordx4 {v(STL+4*k,4)}, {vL16}, {sW}, {sSB} offen offset:{1024*k} sc1", tag="st"))
vq+=hdma_items(2)+hdma_items(3)
if opt("wdpf",1): vq.append(lambda: (E(f"v_add_u32 v26, {43*128}, v26"), E(f"buffer_load_dword v27, v26, {sW}, 0 offen sc1", tag="pf")))
for t in range(4,8): vq+=hdma_items(t)
def WDf(n): return a(192+4*n,4) if n<16 else v(144+4*(n-16),4)
for n in range(44):
    def f(n=n):
        if n%4==0: E(f"s_add_u32 {sT[2]}, {sWDS}, {(n//4)*4096}")
        E(f"buffer_load_dwordx4 {WDf(n)}, {vL16}, {sW}, {sT[2]} offen offset:{1024*(n&3)} sc1", tag="wd")
    if not opt("nowd",0): vq.append(f)
vq.pop(0)(); vq.pop(0)()
if opt("hfirst",0):
    while vq: vq.pop(0)()
    E.wait_vm0()
for k in range(16):
    for m in range(3):
        E(f"v_mfma_f32_16x16x32_bf16 {v(CS+4*m,4)}, {a(Wf(k,m),4)}, {v(60,4)}, {v(CS+4*m,4) if k else '0'}")
A3=52; BR=100; NB=8; T3=132
def acc3(p,tt,m): return A3+24*((p+1)&1)+12*tt+4*m
E.wait_vm("h0"); E("s_barrier")
stamp("h0")
fr3=[(p,k,tt) for p in range(4) for k in range(16) for tt in range(2)]
def rd3(n):
    p,k,tt=fr3[n]
    E(f"ds_read_b128 {v(BR+4*(n%NB),4)}, v{HBV[p]} offset:{tt*16384+k*1024}", tag=f"b{n}")
PD=5
for n in range(PD): rd3(n)
LOG2E=1.4426950408889634
def epilogue(p):
    vM,vK=T3,T3+1
    Q(f"ds_read_b64 {v(vM,2)}, v10 offset:{256*p}", tag="es")
    for m in range(3):
        for r in range(4): Q(f"v_permlane32_swap_b32 v{acc3(p,0,m)+r}, v{acc3(p,1,m)+r}")
    QF(lambda: E.wait_lg("es"))
    els=[(m,r) for m in range(3) for r in range(4)]
    for (m,r) in els[:2]: Q(f"v_fmac_f32 v{acc3(p,0,m)+r}, v{vM}, v{CS+4*m+r}")
    PK=T3+6
    def pk(m,j): return PK+4+j if m==0 else PK+2*(m-1)+j
    for gi in range(6):
        e2=els[2*gi:2*gi+2]; t=[T3+2+2*(gi&1),T3+3+2*(gi&1)]
        for x,(m,r) in enumerate(e2): Q(f"v_mul_f32 v{t[x]}, v{acc3(p,0,m)+r}, v{vK}")
        for x,(m,r) in enumerate(e2):
            Q(f"v_exp_f32 v{t[x]}, v{t[x]}"); Q(f"v_fmac_f32 v{acc3(p,1,m)+r}, v{vM}, v{CS+12+4*m+r}")
        for x,(m,r) in enumerate(e2): Q(f"v_add_f32 v{t[x]}, 1.0, v{t[x]}")
        for x,(m,r) in enumerate(e2):
            Q(f"v_rcp_f32 v{t[x]}, v{t[x]}"); Q(f"v_mul_f32 v{acc3(p,1,m)+r}, v{acc3(p,1,m)+r}, v{acc3(p,0,m)+r}")
        for (m,r) in els[2*gi+2:2*gi+4]: Q(f"v_fmac_f32 v{acc3(p,0,m)+r}, v{vM}, v{CS+4*m+r}")
        for x,(m,r) in enumerate(e2): Q(f"v_mul_f32 v{t[x]}, v{t[x]}, v{acc3(p,1,m)+r}")
        m=e2[0][0]; Q(f"v_cvt_pk_bf16_f32 v{pk(m,gi&1)}, v{t[0]}, v{t[1]}")
        if gi==1:
            Q(f"s_add_u32 {sT[1]}, {sAS}, {2*p*ACT_T}")
            Q(f"buffer_store_dwordx2 {v(PK+4,2)}, v8, {sW}, {sT[1]} offen sc1", tag="ast")
    Q(f"buffer_store_dwordx4 {v(PK,4)}, v9, {sW}, {sT[1]} offen sc1", tag="ast")
def stats_stage():
    for j in range(12): Q(f"v_mov_b32 v{CS+12+j}, v{CS+j}")
    for j in range(12): Q(f"v_permlane32_swap_b32 v{CS+j}, v{CS+12+j}")
    skipq(10)
    QF(lambda: E.wait_vm("st"))
    for j in range(8): Q(f"v_add_f32 v{STL+j}, v{STL+j}, v{STL+8+j}")
    for j in range(4): Q(f"v_add_f32 v{STL+j}, v{STL+j}, v{STL+4+j}")
    Q(f"ds_write_b128 v11, {v(STL,4)}", tag="spw")
    Q(f"v_add_u32 v5, {LSP}, v7")
    skipq(6)
    def bar(): E.wait_lg("spw"); E("s_barrier")
    QF(bar)
    for j in range(4):
        Q(f"ds_read_b32 v{STL+4+2*j}, v5 offset:{1024*j}", tag="spr"); Q(f"ds_read_b32 v{STL+5+2*j}, v5 offset:{1024*j+512}", tag="spr")
    Q(f"v_lshlrev_b32 v5, 1, v7"); Q(f"v_add_u32 v5, {LST}, v5")
    skipq(8)
    QF(lambda: E.wait_lg("spr"))
    S=STL+4
    for j in range(4): Q(f"v_add_f32 v{S+j}, v{S+j}, v{S+4+j}")
    for j in range(2): Q(f"v_add_f32 v{S+j}, v{S+j}, v{S+2+j}")
    Q(f"v_mul_f32 v{S}, {fbits(-1/512)}, v{S}"); Q(f"v_mov_b32 v{S+2}, {fbits(1e-5)}")
    Q(f"v_fmamk_f32 v{S+1}, v{S+1}, {fbits(1/512)}, v{S+2}"); Q(f"v_fma_f32 v{S+1}, -v{S}, v{S}, v{S+1}"); Q(f"v_max_f32 v{S+1}, v{S+1}, v{S+2}")
    Q(f"v_rcp_f32 v{S+2}, v{S+1}"); Q(f"v_rsq_f32 v{S+1}, v{S+1}"); skipq(1)
    Q(f"v_mul_f32 v{S+1}, {fbits(-LOG2E)}, v{S+1}")
    Q(f"ds_write_b64 v5, {v(S,2)}", tag="stw")
    def rs():
        L=E.newlabel()
        E(f"s_cmp_lg_u32 {sCB}, 0"); E(f"s_cbranch_scc1 {L}")
        E(f"s_lshl_b32 {sT[1]}, {sG3}, 9"); E(f"s_add_u32 {sT[1]}, {sT[1]}, {RSOFF}")
        E(f"buffer_store_dword v{S+2}, v7, {sW}, {sT[1]} offen sc1", tag="rs", optional=True)
        E.label(L)
    QF(rs)
VSTEP=opt("vstep",5); nm=0
for n in range(128):
    p,k,tt=fr3[n]
    if k==0 and tt==0:
        assert not fill, len(fill)
        if p==0: stats_stage()
        elif not opt("noepi",0): skipq(6); epilogue(p-1)
    E.wait_lg(f"b{n}")
    for m in range(3):
        d=acc3(p,tt,m)
        E(f"v_mfma_f32_16x16x32_bf16 {v(d,4)}, {a(Wf(k,m),4)}, {v(BR+4*(n%NB),4)}, {v(d,4) if k else '0'}")
        nm+=1
        if nm%VSTEP==0 and vq: vq.pop(0)(); pop(1 if m<2 else 0)
        else: pop(2 if m<2 else 1)
    nn=n+PD
    if nn<128:
        if fr3[nn][1:]==(0,0):
            if fr3[nn][0]==1: drain()
            E.wait_lg("stw"); E.wait_vm(f"h{fr3[nn][0]}"); E("s_barrier")
        rd3(nn)
    if (k,tt)==(15,1): drain()
stamp("p3mfma")
epilogue(3); drain()
print("leftover vq", len(vq))
E(f"s_lshl_b32 {sT[0]}, {sG3}, 8"); E(f"s_add_u32 {sT[0]}, {sT[0]}, {80*CSTR}"); E(f"v_mov_b32 v6, {sT[0]}")
stamp("p3end")
while vq: vq.pop(0)()
E.wait_vm("ast"); E("s_barrier")
signal("v6")
stamp("sig3")
HR=12; HW=92
sOT=sHS
E(f"s_add_u32 {sOT}, {sWV}, {sJB}"); E(f"s_and_b32 {sOT}, {sOT}, 3")
E(f"s_lshl_b32 {sT[0]}, {sCLS}, 2"); E(f"s_add_u32 {sT[0]}, {sT[0]}, {sOT}"); E(f"s_lshl_b32 {sT[1]}, {sGA}, 17"); E(f"s_lshl_b32 {sT[2]}, {sT[0]}, 14"); E(f"s_add_u32 {sT[1]}, {sT[1]}, {sT[2]}")
E(f"s_cmp_ge_u32 {sJB}, 4"); E(f"s_cselect_b32 {sT[3]}, 31, 0"); E(f"s_cselect_b32 {sT[4]}, 8192, 0"); E(f"s_add_u32 {sSS}, {sT[1]}, {sT[4]}"); E(f"s_add_u32 {sSS}, {sSS}, {HOFF}")
E(f"s_lshl_b32 {sT[2]}, {sJB}, 2"); E(f"v_add_u32 v5, {sT[2]}, {vG}"); E(f"v_xor_b32 v8, {sT[3]}, v5")
for (src,dst) in ((8,7),(9,11)):
    if src==9: E("v_add_u32 v9, 1, v8"); E("v_and_b32 v9, 15, v9")
    E(f"v_lshrrev_b32 v{dst}, 2, v{src}"); E(f"v_lshlrev_b32 v{dst}, 11, v{dst}"); E(f"v_and_b32 v10, 3, v{src}"); E(f"v_lshl_add_u32 v{dst}, v10, 8, v{dst}"); E(f"v_lshl_add_u32 v{dst}, {vI}, 4, v{dst}")
E(f"s_lshl_b32 {sT[1]}, {sGA}, 9"); E(f"s_lshl_b32 {sT[0]}, {sT[0]}, 6"); E(f"s_add_u32 {sSB}, {sT[0]}, {sT[1]}"); E(f"s_add_u32 {sSB}, {sSB}, {RSOFF}"); E(f"v_lshlrev_b32 v139, 2, {vI}")
E(f"s_lshl_b32 {sT[0]}, {sOT}, 4"); E(f"v_add_u32 v10, {sT[0]}, {vI}"); E(f"v_lshl_add_u32 v10, v10, 5, {sT1}"); E("v_lshlrev_b32 v10, 10, v10"); E("v_lshl_add_u32 v10, v5, 5, v10")
E(f"s_mul_i32 {sT[0]}, {sGA}, {ACT_G}"); E(f"s_mul_i32 {sT[1]}, {sCLS}, {4*ACT_T}"); E(f"s_add_u32 {sT[0]}, {sT[0]}, {sT[1]}"); E(f"s_mul_i32 {sT[1]}, {sWV}, {11*1024}")
E(f"s_add_u32 {sT[0]}, {sT[0]}, {sT[1]}"); E(f"s_add_u32 {sT[0]}, {sT[0]}, {ACTOFF}")
order=[1,2,3,0]
for x,n_ in enumerate(order):
    E(f"s_add_u32 {sT[1]}, {sOT}, {n_}"); E(f"s_and_b32 {sT[1]}, {sT[1]}, 3")
    if n_:
        E(f"s_mul_i32 {sT[6]}, {sT[1]}, 12288"); E(f"s_add_u32 {sT[6]}, {sT[6]}, {(n_-1)*4096}"); E(f"v_add_u32 v{139+n_}, {sT[6]}, {vL16}")
    E(f"s_mul_i32 {sT[1]}, {sT[1]}, {ACT_T}"); E(f"s_add_u32 {sT[2+x]}, {sT[0]}, {sT[1]}")
E(f"s_mul_i32 {sT[6]}, {sOT}, 12288"); E(f"v_add_u32 v143, {sT[6]}, {vL16}")
E(f"v_add_u32 v8, 4096, {vL16}"); E(f"v_add_u32 v9, 8192, {vL16}")
E(f"s_lshl_b32 {sT[0]}, {sGA}, 8"); E(f"s_add_u32 {sT[0]}, {sT[0]}, {80*CSTR}"); E(f"v_mov_b32 v6, {sT[0]}")
stamp("W6")
poll("v6", sW, 16)
stamp("sync3")
aq=[]
for x in range(4):
    for kk in range(11):
        aq.append(lambda x=x,kk=kk: E(f"buffer_load_dwordx4 {a((x*11+kk)*4,4)}, {[vL16,'v8','v9'][kk>>2]}, {sW}, {sT[2+x]} offen offset:{1024*(kk&3)} sc1", tag=f"a{x}_{kk}"))
    if x==0:
        aq.append(lambda: (E(f"buffer_load_dwordx4 {v(HW,4)}, v7, {sW}, {sSS} offen sc1", tag="hr"), E(f"buffer_load_dwordx4 {v(HW+4,4)}, v7, {sW}, {sSS} offen offset:1024 sc1", tag="hr")))
        aq.append(lambda: (E(f"buffer_load_dword v{HW+8}, v11, {sW}, {sSS} offen sc1", tag="hr"), E(f"buffer_load_dword v11, v139, {sW}, {sSB} offen sc1", tag="hr")))
AD=opt("ad",10)
for _ in range(AD): aq.pop(0)()
A4=28; PR=92
def unpack_hres():
    E.wait_vm("hr")
    L1=E.newlabel(); L2=E.newlabel()
    E(f"s_mov_b32 {sT[6]}, 0xffff0000")
    E(f"s_cmp_ge_u32 {sJB}, 4"); E(f"s_cbranch_scc1 {L1}")
    def put(j,el):
        r,b,eta=el>>2,(el>>1)&1,el&1; sg=4*eta+r; src=HW+4*b+(sg>>1)
        if sg&1: E(f"v_and_b32 v{HR+j}, {sT[6]}, v{src}")
        else: E(f"v_lshlrev_b32 v{HR+j}, 16, v{src}")
    for j in range(16): put(j,j)
    E(f"s_branch {L2}"); E.label(L1)
    E(f"v_lshlrev_b32 v{HR}, 16, v{HW+8}")
    for j in range(1,16): put(j,16-j)
    E.label(L2)
for x in range(4):
    for kk in range(11):
        E.wait_vm(f"a{x}_{kk}")
        if aq: aq.pop(0)()
        if kk==10:
            drain()
            Lk=E.newlabel(); E(f"s_cmp_eq_u32 {sWV}, 3"); E(f"s_cbranch_scc1 {Lk}")
        for m in range(4):
            d=A4+16*x+4*m
            E(f"v_mfma_f32_16x16x32_bf16 {v(d,4)}, {WDf(kk*4+m)}, {a((x*11+kk)*4,4)}, {v(d,4) if kk else '0'}")
            if kk<10: pop(1)
        if kk==10: E.label(Lk)
    if x<3:
        skipq(8)
        for m in range(4): Q(f"ds_write_b128 v{140+x}, {v(A4+16*x+4*m,4)} offset:{1024*m}", tag="pw")
    if x==0: QF(unpack_hres)
    if x==2:
        skipq(6)
        def bar(): E.wait_lg0(); E("s_barrier")
        QF(bar)
        for j in range(12): Q(f"ds_read_b128 {v(PR+4*j,4)}, v143 offset:{1024*j}", tag="pr")
stamp("p4mfma")
E.wait_lg0()
for j in range(16): E(f"v_add_f32 v{PR+j}, v{PR+j}, v{PR+16+j}")
for j in range(16): E(f"v_add_f32 v{PR+j}, v{PR+j}, v{PR+32+j}")
for j in range(16): E(f"v_add_f32 v{PR+j}, v{PR+j}, v{A4+48+j}")
for j in range(16):
    r,m=j>>2,j&3
    E(f"v_fmac_f32 v{HR+j}, v{PR+4*m+r}, v11")
for j in range(8): E(f"v_cvt_pk_bf16_f32 v{A4+j}, v{HR+2*j}, v{HR+2*j+1}")
E(f"buffer_store_dwordx4 {v(A4,4)}, v10, {sO}, 0 offen"); E(f"buffer_store_dwordx4 {v(A4+4,4)}, v10, {sO}, 0 offen offset:16")
if STAMPS:
    E.wait_vm0(); stamp("end")
    ns=nst[0]
    E(f"s_cmp_lg_u32 {sWV}, 0"); E("s_cbranch_scc1 Lend")
    E(f"s_mul_i32 {sT[0]}, s2, {ns*8}"); E(f"s_add_u32 {sT[0]}, {sT[0]}, {STAMPOFF}"); E("v_mov_b32 v5, 0"); E("s_mov_b64 exec, 1")
    for i in range(ns):
        r=98 if i==0 else (5+i if i<23 else 56+i-23)
        E(f"v_mov_b32 v6, s{r}"); E(f"v_mov_b32 v7, 0"); E(f"buffer_store_dwordx2 v[6:7], v5, {sW}, {sT[0]} offen offset:{8*i}")
    print("nstamps",ns, " ".join(snames))
E.label("Lend"); E("s_endpgm")

hdr=open("cdna_kernels/"+NAME+".s.ref").read().split("; Override")[0]
txt=hdr+f"; @launch grid=(256,1,1) block=(256,1,1) lds={LDS_TOTAL}\n"
txt+=f""".amdgcn_target "amdgcn-amd-amdhsa--gfx950"
.text
.globl {NAME}_kernel
.p2align 8
.type {NAME}_kernel,@function
{NAME}_kernel:
"""+E.text()+f""".section .rodata,"a"
.p2align 6
.amdhsa_kernel {NAME}_kernel
  .amdhsa_next_free_vgpr 512
  .amdhsa_next_free_sgpr 102
  .amdhsa_accum_offset 256
  .amdhsa_group_segment_fixed_size 0
  .amdhsa_kernarg_size 96
  .amdhsa_user_sgpr_count 2
  .amdhsa_user_sgpr_kernarg_segment_ptr 1
  .amdhsa_system_sgpr_workgroup_id_x 1
.end_amdhsa_kernel
"""
open(OUT,"w").write(txt)
print("lines",len(E.lines),"nops",E.nnops)
```

```python
import sys, struct
from emit import Em
from asmlib import NAME
STAMPS = "--stamps" in sys.argv
OPT = {a[2:].split("=")[0]: (a.split("=")[1] if "=" in a else "1") for a in sys.argv[1:] if a.startswith("--")}
OUT = [a for a in sys.argv[1:] if not a.startswith("--")]
OUT = OUT[0] if OUT else "k.s"
def opt(k, d): return type(d)(OPT.get(k, d))
def fbits(x): return "0x%08x"%struct.unpack("<I",struct.pack("<f",x))[0]

CSTR=256
UOFF=0x100000; HOFF=0x300000; STOFF=0x500000; RSOFF=0x540000; WDOFF=0x580000; ACTOFF=0x700000; STAMPOFF=0xD00000
ACT_T=49152; ACT_G=8*ACT_T
SLOT=24640; UPO=12288+32
LSLOT=[32768+i*SLOT for i in range(5)]
LMISC=32768+5*SLOT
LPART=LMISC; LRT=LMISC+4608
LU=LSLOT[2]
LSP=131072
LST=LSP+4096
CHUNK_SLOT=[LSLOT[0],LSLOT[1],LSLOT[2],LSLOT[3],LSLOT[4], 0, LSLOT[0], LSLOT[1]]
LDS_TOTAL=163840
sX,sG,sU,sD,sO,sW,sB = [f"s[{28+4*i}:{31+4*i}]" for i in range(7)]
sWV,sS2,sQ,sGA,sMU,sT1,sJB,sCLS = [f"s{64+i}" for i in range(8)]
sT=[f"s{72+i}" for i in range(8)]
sWD,sWM,sWL,sJOB,sUS,sGW,sHS,sSS,sHB,sW4,sSB,sAS,sWDS,sCB,sG3,sJ = [f"s{80+i}" for i in range(16)]
sONE="s3"
def v(i,n=1): return f"v{i}" if n==1 else f"v[{i}:{i+n-1}]"
def a(i,n=1): return f"a{i}" if n==1 else f"a[{i}:{i+n-1}]"
vL,vI,vG,vL16="v1","v2","v3","v4"
E=Em()
nst=[0]; snames=["start"]
def stamp(name):
    if STAMPS:
        i=nst[0]
        E.wait_lg0(); E(f"{'s_memtime' if opt('cyc',0) else 's_memrealtime'} s[100:101]"); E("s_waitcnt lgkmcnt(0)"); E(f"s_mov_b32 s{5+i if i<23 else 56+i-23}, s100")
    nst[0]+=1; snames.append(name)
POLL_LIMIT=0x20000
def poll(vaddr, srd, target, vtmp="v5"):
    skip=E.newlabel(); loop=E.newlabel()
    E(f"s_cmp_lg_u32 {sWV}, 0"); E(f"s_cbranch_scc1 {skip}")
    st=E.save()
    E(f"s_mov_b32 {sT[7]}, {POLL_LIMIT}")
    E.label(loop)
    E(f"buffer_load_dword {vtmp}, {vaddr}, {srd}, 0 offen sc1")
    E("s_waitcnt vmcnt(0)")
    E(f"v_cmp_ne_u32 vcc, {target}, {vtmp}")
    E(f"s_cbranch_vccz {skip}")
    E(f"s_sub_u32 {sT[7]}, {sT[7]}, 1"); E(f"s_cbranch_scc0 {loop}")
    E.restore(st); E.label(skip); E.hist=[]
    E("s_barrier")
def signal(vaddr):
    Ls=E.newlabel()
    E(f"s_cmp_lg_u32 {sWV}, 0"); E(f"s_cbranch_scc1 {Ls}")
    E("v_mov_b32 v5, 1"); E("s_mov_b64 exec, 1")
    E(f"buffer_atomic_add v5, {vaddr}, {sW}, 0 offen", tag="sig", optional=True); E("s_mov_b64 exec, -1")
    E.label(Ls); E.hist=[]
fill=[]
def Q(t,**kw): fill.append(lambda: E(t,**kw))
def QF(f): fill.append(f)
def skipq(n=1):
    for _ in range(n): fill.append(lambda: None)
def pop(n=1):
    for _ in range(n):
        if fill: fill.pop(0)()
def drain():
    while fill: fill.pop(0)()
def classof(dst, ga, cls, tmp):
    E(f"s_sub_u32 {tmp}, 32, {ga}"); E(f"s_cmp_eq_u32 {ga}, 0"); E(f"s_cselect_b32 {tmp}, 16, {tmp}")
    E(f"s_cmp_eq_u32 {cls}, 0"); E(f"s_cselect_b32 {dst}, {ga}, {tmp}")
def sincos_frag(vf, vbase, mults, dcos, dsin, t=10):
    for j in range(4):
        for hh in range(2):
            m=mults[2*j+hh]
            E(f"v_fmamk_f32 v{t+hh}, {vf}, {fbits(m)}, {vbase}")
        E(f"v_cos_f32 v{t+2}, v{t}"); E(f"v_cos_f32 v{t+3}, v{t+1}"); E(f"v_sin_f32 v{t+4}, v{t}"); E(f"v_sin_f32 v{t+5}, v{t+1}")
        E(f"v_cvt_pk_bf16_f32 v{dcos+j}, v{t+2}, v{t+3}"); E(f"v_cvt_pk_bf16_f32 v{dsin+j}, v{t+4}, v{t+5}")

if STAMPS: E(f"{'s_memtime' if opt('cyc',0) else 's_memrealtime'} s[98:99]")
nst[0]=1
E("s_cmp_ge_u32 s2, 256"); E("s_cbranch_scc1 Lend")
E("s_load_dwordx2 s[4:5], s[0:1], 0"); E("s_load_dwordx4 s[16:19], s[0:1], 48"); E("s_load_dwordx8 s[20:27], s[0:1], 64")
E("v_lshrrev_b32 v5, 6, v0"); E(f"v_and_b32 {vL}, 63, v0"); E(f"v_readfirstlane_b32 {sWV}, v5")
E(f"v_and_b32 {vI}, 15, v0"); E(f"v_lshrrev_b32 {vG}, 4, {vL}"); E(f"v_lshlrev_b32 {vL16}, 4, {vL}")
E(f"s_mov_b32 {sONE}, 0x3f803f80")
E(f"s_lshr_b32 {sJ}, s2, 3"); E(f"s_and_b32 {sQ}, {sJ}, 3")
E(f"s_and_b32 {sT[0]}, s2, 7"); E(f"s_bfe_u32 {sT[1]}, s2, 0x10005"); E(f"s_lshl_b32 {sT[1]}, {sT[1]}, 3"); E(f"s_add_u32 {sT[0]}, {sT[0]}, {sT[1]}")
E(f"s_bfe_u32 {sT[1]}, s2, 0x10006"); classof(sS2, sT[0], sT[1], sT[2])
E(f"s_lshr_b32 {sT[1]}, s2, 7"); E(f"s_lshl_b32 {sT[1]}, {sT[1]}, 5"); E(f"s_add_u32 {sS2}, {sS2}, {sT[1]}")
E(f"s_and_b32 {sT[0]}, {sWV}, 1"); E(f"s_lshl_b32 {sT[0]}, {sT[0]}, 7"); E(f"v_xor_b32 v6, {sT[0]}, {vL16}")
E(f"s_lshl_b32 {sT[2]}, {sWV}, 19"); E(f"s_lshl_b32 {sT[3]}, {sS2}, 10"); E(f"s_add_u32 {sT[2]}, {sT[2]}, {sT[3]}")
E(f"s_lshl_b32 {sT[3]}, {sWV}, 13")
E(f"s_and_b32 {sCB}, s2, 3"); E(f"s_lshl_b32 {sCB}, {sCB}, 2"); E(f"s_add_u32 {sCB}, {sCB}, {sQ}")
E(f"s_lshl_b32 {sGW}, s2, 2"); E(f"s_add_u32 {sGW}, {sGW}, {sWV}")
def srd(base, lo, size):
    E(f"s_mov_b32 s{base}, s{lo}"); E(f"s_and_b32 s{base+1}, s{lo+1}, 0xffff"); E(f"s_mov_b32 s{base+2}, {size}"); E(f"s_mov_b32 s{base+3}, 0x20000")
E("s_waitcnt lgkmcnt(0)")
srd(28,4,2097152); srd(48,26,0x1000000)
Lnz=E.newlabel()
E(f"s_cmp_lg_u32 {sGW}, 2"); E(f"s_cbranch_scc1 {Lnz}")
E(f"v_lshlrev_b32 v9, 8, {vL}"); E("v_mov_b32 v10, 0"); E(f"s_mov_b32 {sT[5]}, {64*CSTR}")
E(f"buffer_store_dword v10, v9, {sW}, 0 offen sc1", tag="zero", optional=True)
E(f"buffer_store_dword v10, v9, {sW}, {sT[5]} offen sc1", tag="zero", optional=True)
E.label(Lnz); E.hist=[]
for k in range(8):
    E(f"s_mov_b32 m0, {sT[3]}")
    if k: E(f"v_xor_b32 v5, {k<<4}, v6")
    E(f"buffer_load_dwordx4 {'v5' if k else 'v6'}, {sX}, {sT[2]} offen lds", tag="x")
    if k<7: E(f"s_add_u32 {sT[3]}, {sT[3]}, 1024"); E(f"s_add_u32 {sT[2]}, {sT[2]}, 65536")
srd(32,16,1409024); srd(36,18,1409024)
E(f"s_lshr_b32 {sT[0]}, {sJ}, 2"); E(f"s_mul_i32 {sT[0]}, {sT[0]}, {64*2752}"); E(f"s_mul_i32 {sT[1]}, {sCB}, 192"); E(f"s_add_u32 {sT[0]}, {sT[0]}, {sT[1]}")
E(f"s_lshr_b32 {sT[2]}, {sWV}, 1"); E(f"s_mul_i32 {sT[2]}, {sT[2]}, 188"); E(f"s_add_u32 {sT[0]}, {sT[0]}, {sT[2]}")
E(f"v_mul_u32_u24 v5, 2752, {vL}")
Lu=E.newlabel(); Lv=E.newlabel()
E(f"s_bitcmp1_b32 {sWV}, 0"); E(f"s_cbranch_scc1 {Lu}")
E(f"buffer_load_dword v27, v5, {sG}, {sT[0]} offen", tag="pf"); E(f"s_branch {Lv}")
E.label(Lu); E(f"buffer_load_dword v27, v5, {sU}, {sT[0]} offen", tag="pf2", optional=True); E.label(Lv); E.hist=[]
E(f"s_getpc_b64 s[4:5]"); E.label("Lpc")
E(f"v_and_b32 v5, 1, {vL}"); E(f"s_lshl_b32 {sT[0]}, {sJ}, 2"); E(f"s_add_u32 {sT[0]}, {sT[0]}, {sWV}"); E(f"s_lshl_b32 {sT[0]}, {sT[0]}, 8")
E(f"v_lshl_add_u32 v5, v5, 7, {sT[0]}"); E(f"v_min_u32 v5, Lend-Lpc, v5")
E(f"global_load_dword v27, v5, s[4:5]", tag="pf")
srd(40,20,1409024); srd(44,22,2097152); srd(52,24,256)
E(f"s_and_b32 {sGA}, s2, 15"); E(f"s_lshr_b32 {sMU}, s2, 4"); E(f"s_and_b32 {sCLS}, {sMU}, 1"); E(f"s_lshr_b32 {sJB}, {sMU}, 1")
classof(sT1, sGA, sCLS, sT[0])
E(f"s_bfe_u32 {sG3}, s2, 0x10002"); E(f"s_lshl_b32 {sG3}, {sG3}, 3"); E(f"s_lshr_b32 {sT[0]}, {sJ}, 2"); E(f"s_add_u32 {sG3}, {sG3}, {sT[0]}")
BC,BS=60,76
E(f"s_lshl_b32 {sT[1]}, {sQ}, 6"); E(f"s_add_u32 {sT[1]}, {sT[1]}, {sWV}")
E(f"v_lshl_add_u32 v7, {vI}, 2, {sT[1]}"); E("v_mov_b32 v8, 256"); E("v_cmp_eq_u32 vcc, 0, v7"); E("v_cndmask_b32 v7, v7, v8, vcc")
E("v_cvt_f32_u32 v7, v7"); E(f"v_cvt_f32_u32 v26, {vG}"); E(f"v_mul_f32 v7, {fbits(-1/512)}, v7"); E("v_mul_f32 v8, v7, v26"); E(f"v_mul_f32 v8, {fbits(8.0)}, v8")
for k in range(4): sincos_frag("v7","v8",[32*k+s_ for s_ in range(8)],BC+4*k,BS+4*k)
G=92
def Gf(tau,j): return G+16*tau+4*j
E(f"s_bitcmp1_b32 {sS2}, 3"); E(f"s_cselect_b32 {sT[0]}, 0xbe800000, 0"); E(f"s_cselect_b32 {sT[1]}, 0x80008000, 0"); E(f"s_cselect_b32 {sT[2]}, 0, 0x80008000")
E(f"v_lshlrev_b32 v5, 8, {vG}"); E(f"v_add_u32 v5, {sS2}, v5"); E("v_cvt_f32_u32 v5, v5"); E("v_mul_f32 v5, 0x3a000000, v5")
def gen_G():
    for tau in range(2):
        E(f"v_add_u32 v8, {16*tau}, {vI}"); E("v_cvt_f32_u32 v8, v8")
        E(f"v_mov_b32 v9, {sT[0]}"); E("v_fmac_f32 v9, v8, v5")
        sincos_frag("v8","v9",[((s_&3)+16*(s_>>2))/32.0 for s_ in range(8)],Gf(tau,0),Gf(tau,1))
        for j in range(4):
            E(f"v_xor_b32 v{Gf(tau,2)+j}, {sT[1]}, v{Gf(tau,1)+j}"); E(f"v_xor_b32 v{Gf(tau,3)+j}, {sT[2]}, v{Gf(tau,0)+j}")
gen_G()
for k in range(3):
    E(f"v_add_u32 v5, {64*k}, {vL}"); E(f"v_mul_u32_u24 v8, 0x1556, v5"); E("v_lshrrev_b32 v8, 16, v8")
    E(f"v_mul_u32_u24 v10, 12, v8"); E("v_sub_u32 v5, v5, v10"); E("v_lshlrev_b32 v5, 4, v5")
    E(f"v_mul_u32_u24 v8, {4*2752}, v8")
    E(f"v_add_u32 v{16+k}, v8, v5")
    E(f"v_sub_u32 v{19+k}, v5, v8"); E(f"v_add_u32 v{19+k}, {60*2752}, v{19+k}")
E(f"v_add_u32 v22, {256*2752}, v19"); E(f"s_cmp_eq_u32 {sWV}, 0"); E(f"s_cselect_b32 {sT[0]}, 12, 0")
E(f"v_cmp_gt_u32 vcc, {sT[0]}, {vL}"); E("v_cndmask_b32 v22, v22, v19, vcc")
E(f"s_mul_i32 {sT[0]}, {sCB}, 192"); E(f"s_mul_i32 {sT[1]}, {sWV}, 2752")
E(f"s_add_u32 {sWD}, {sT[0]}, {sT[1]}"); E(f"s_sub_u32 {sWM}, {sT[0]}, {sT[1]}"); E(f"s_add_u32 {sWM}, {sWM}, {452*2752}")
E(f"s_mul_i32 {sWL}, {sWV}, 3072")
def wchunk_items(c):
    slot=CHUNK_SLOT[c]; items=[]
    for mi,(S,o) in enumerate(((sG,0),(sU,UPO))):
        for k in range(3):
            def f(mi=mi,S=S,o=o,k=k):
                if mi==0 and k==0:
                    if c<4: E(f"s_add_u32 {sT[5]}, {sWD}, {64*c*2752}")
                    else:   E(f"s_sub_u32 {sT[5]}, {sWM}, {64*(c-4)*2752}")
                    if c==4: E(f"s_sub_u32 {sT[6]}, {sT[5]}, {256*2752}")
                E(f"s_add_u32 m0, {sWL}, {slot+o+1024*k}")
                vo=f"v{16+k}" if c<4 else f"v{19+k}"; so=sT[5]
                if c==4 and k==0: vo="v22"; so=sT[6]
                E(f"buffer_load_dwordx4 {vo}, {S}, {so} offen lds", tag=f"w{c}")
            items.append(f)
    return items
def wchunk(c):
    for f in wchunk_items(c): f()
RP=220
E(f"s_mov_b32 {sJOB}, 999"); E(f"s_cmp_eq_u32 {sWV}, 1"); E(f"s_cselect_b32 {sJOB}, s2, {sJOB}")
E(f"s_add_u32 {sT[0]}, s2, 256"); E(f"s_cmp_eq_u32 {sWV}, 3"); E(f"s_cselect_b32 {sJOB}, {sT[0]}, {sJOB}")
E(f"s_lshr_b32 {sT[0]}, {sJOB}, 3"); E(f"s_lshl_b32 {sT[0]}, {sT[0]}, 2"); E(f"v_add_u32 v5, {sT[0]}, {vG}")
E("v_mul_u32_u24 v8, 0x5556, v5"); E("v_lshrrev_b32 v8, 16, v8")
E("v_mul_u32_u24 v10, 3, v8"); E("v_sub_u32 v5, v5, v10"); E("v_mul_u32_u24 v8, 24, v8")
E("v_lshlrev_b32 v10, 2, v5"); E("v_add_u32 v10, 4, v10"); E("v_cmp_eq_u32 vcc, 0, v5"); E("v_cndmask_b32 v10, v10, v5, vcc")
E("v_add_u32 v8, v8, v10"); E("v_mov_b32 v10, 8"); E("v_cndmask_b32 v10, v10, 4, vcc") ; E("v_add_u32 v10, v8, v10")
E(f"v_lshlrev_b32 v5, 3, {vI}"); E("v_lshl_add_u32 v24, v8, 10, v5"); E("v_lshl_add_u32 v25, v10, 10, v5")
Lnr=E.newlabel()
E(f"s_cmp_ge_u32 {sJOB}, 344"); E(f"s_cbranch_scc1 {Lnr}")
E(f"s_and_b32 {sT[0]}, {sJOB}, 7"); E(f"s_lshl_b32 {sT[0]}, {sT[0]}, 7")
for s_ in range(8):
    E(f"buffer_load_dwordx2 {v(RP+2*s_,2)}, {'v24' if s_<4 else 'v25'}, {sD}, {sT[0]} offen offset:{1024*(s_&3)}", tag="rp", optional=True)
E.label(Lnr); E.hist=[]
E(f"v_xor_b32 v5, {vG}, {vI}"); E("v_lshlrev_b32 v5, 4, v5"); E(f"v_lshl_add_u32 v8, {vI}, 10, v5")
for k in range(1,4): E(f"v_xor_b32 v{8+k}, {k<<6}, v8")
E(f"s_lshl_b32 {sT[0]}, {sWV}, 5"); E(f"s_add_u32 {sT[0]}, {sT[0]}, {LPART}"); E(f"v_mul_u32_u24 v12, 144, {vI}"); E(f"v_lshl_add_u32 v12, {vG}, 3, v12"); E(f"v_add_u32 v12, {sT[0]}, v12")
E(f"v_and_b32 v5, 31, {vL}"); E("v_mul_u32_u24 v13, 144, v5"); E(f"v_and_b32 v6, 32, {vL}"); E("v_lshl_add_u32 v13, v6, 1, v13"); E(f"v_add_u32 v13, {LPART}, v13")
E(f"s_lshl_b32 {sT[0]}, {sWV}, 7"); E(f"s_add_u32 {sT[0]}, {sT[0]}, {LRT}"); E(f"v_lshl_add_u32 v14, v5, 2, {sT[0]}"); E(f"v_lshl_add_u32 v15, {vG}, 4, {sT[0]}")
E(f"v_lshlrev_b32 v7, 16, {vI}"); E(f"v_lshl_add_u32 v7, {vG}, 4, v7")
E(f"s_lshr_b32 {sT[0]}, {sWV}, 1"); E(f"s_lshl_b32 {sT[1]}, {sQ}, 1"); E(f"s_add_u32 {sT[0]}, {sT[0]}, {sT[1]}"); E(f"s_lshl_b32 {sT[0]}, {sT[0]}, 13")
E(f"s_lshl_b32 {sT[1]}, {sS2}, 7"); E(f"s_add_u32 {sT[0]}, {sT[0]}, {sT[1]}")
E(f"s_lshr_b32 {sT[1]}, {sS2}, 1"); E(f"s_xor_b32 {sT[1]}, {sT[1]}, {sWV}"); E(f"s_and_b32 {sT[1]}, {sT[1]}, 1"); E(f"s_lshl_b32 {sT[1]}, {sT[1]}, 6")
E(f"s_add_u32 {sT[0]}, {sT[0]}, {sT[1]}"); E(f"s_add_u32 {sUS}, {sT[0]}, {UOFF}")
stamp("pro")
E.wait_vm("x"); E("s_barrier")
stamp("xland")
Lnz=E.newlabel()
E(f"s_cmp_lg_u32 {sGW}, 2"); E(f"s_cbranch_scc1 {Lnz}")
st=E.save(); E.wait_vm("zero"); E("v_mov_b32 v5, 0"); E("v_mov_b32 v6, 1"); E("s_mov_b64 exec, 1")
E(f"buffer_store_dword v6, v5, {sB}, 0 offen sc1"); E("s_mov_b64 exec, -1"); E.restore(st); E.vm.append(("flag",True))
E.label(Lnz); E.hist=[]
ACC=124; AR=156; NR=16
def acc(name,rho): return ACC+16*rho+4*{"aP":0,"aM":1,"bP":2,"bM":3}[name]
Lj=E.newlabel(); Lw=[E.newlabel() for _ in range(4)]
for w in range(1,4):
    E(f"s_cmp_eq_u32 {sWV}, {w}"); E(f"s_cbranch_scc1 {Lw[w]}")
st0=E.save()
SA=44
for w in range(4):
    E.restore(st0); E.label(Lw[w]); E.hist=[]
    frs=[(b%4,k,rho) for b in range(w,w+4) for k in range(4) for rho in range(2)]
    used=set()
    def rd(n):
        b,k,rho=frs[n]
        E(f"ds_read_b128 {v(AR+4*(n%NR),4)}, v{8+k} offset:{rho*16384+b*256}", tag=f"f{n}")
    for n in range(12): rd(n)
    for j in range(4): E(f"v_mov_b32 v{SA+j}, 0")
    wq=wchunk_items(0)+wchunk_items(1)
    for f in wq[:4]: f()
    wq=wq[4:]
    for n in range(32):
        b,k,rho=frs[n]; p=(w*b)&3; fr=AR+4*(n%NR)
        E.wait_lg(f"f{n}")
        for (B,names) in ((BC,("aP","bM","aM","bP")),(BS,("bP","aP","bM","aM"))):
            d=acc(names[p],rho); c=v(d,4) if (names[p],rho) in used else "0"; used.add((names[p],rho))
            E(f"v_mfma_f32_16x16x32_bf16 {v(d,4)}, {v(fr,4)}, {v(B+4*k,4)}, {c}")
            if n<8:
                for j in (0,1) if B==BC else (2,3):
                    E(f"v_dot2c_f32_bf16 v{SA+2*rho}, {sONE}, v{fr+j}"); E(f"v_dot2c_f32_bf16 v{SA+2*rho+1}, v{fr+j}, v{fr+j}")
            else: pop(2)
        if n+12<32: rd(n+12)
        if n%3==2 and n>=8 and wq: wq.pop(0)()
        if n==7:
            Q(f"ds_write_b64 v12, {v(SA,2)}", tag="sw"); Q(f"ds_write_b64 v12, {v(SA+2,2)} offset:{16*144}", tag="sw")
            skipq(4)
            def bar(): E.wait_lg("sw"); E("s_barrier")
            QF(bar)
            for j in range(4): Q(f"ds_read_b128 {v(SA+4*j,4)}, v13 offset:{16*j}", tag="sr")
            skipq(8)
            QF(lambda: E.wait_lg("sr"))
            for j in range(8): Q(f"v_add_f32 v{SA+j}, v{SA+j}, v{SA+8+j}")
            for j in range(4): Q(f"v_add_f32 v{SA+j}, v{SA+j}, v{SA+4+j}")
            for j in range(2): Q(f"v_add_f32 v{SA+j}, v{SA+j}, v{SA+2+j}")
            Q(f"v_mov_b32 v{SA+2}, v{SA}"); Q(f"v_mov_b32 v{SA+3}, v{SA+1}")
            skipq(2)
            Q(f"v_permlane32_swap_b32 v{SA}, v{SA+2}"); Q(f"v_permlane32_swap_b32 v{SA+1}, v{SA+3}")
            Q(f"v_add_f32 v{SA}, v{SA}, v{SA+2}"); Q(f"v_add_f32 v{SA+1}, v{SA+1}, v{SA+3}")
            Q(f"v_mul_f32 v{SA}, {fbits(1/512)}, v{SA}"); Q(f"v_mov_b32 v{SA+2}, {fbits(1e-5)}")
            Q(f"v_fmamk_f32 v{SA+1}, v{SA+1}, {fbits(1/512)}, v{SA+2}"); Q(f"v_fma_f32 v{SA+1}, -v{SA}, v{SA}, v{SA+1}")
            Q(f"v_max_f32 v{SA+1}, v{SA+1}, v{SA+2}")
            Q(f"v_rsq_f32 v{SA+1}, v{SA+1}"); skipq(1)
            Q(f"ds_write_b32 v14, v{SA+1}", tag="rw")
            Q(f"ds_read_b128 {v(SA+4,4)}, v15", tag="rr"); Q(f"ds_read_b128 {v(SA+8,4)}, v15 offset:64", tag="rr")
    drain()
    assert not wq
    E.wait_lg("rr")
    for (P,M,dst) in (("aP","aM",AR),("bP","bM",AR+4)):
        for rho in range(2):
            for r in range(4):
                x=acc(P,rho)+r
                if (M,rho) in used: E(f"v_sub_f32 v{x}, v{x}, v{acc(M,rho)+r}")
                E(f"v_mul_f32 v{x}, v{x}, v{SA+4+4*rho+r}")
            for j in range(2): E(f"v_cvt_pk_bf16_f32 v{dst+2*rho+j}, v{acc(P,rho)+2*j}, v{acc(P,rho)+2*j+1}")
    if w<3: E(f"s_branch {Lj}")
E.label(Lj); E.hist=[]; E("s_nop 1")
S2A=AR+8
for tau in range(2):
    for part in range(2): E(f"v_mfma_f32_16x16x32_bf16 {v(S2A+8*tau+4*part,4)}, {v(AR,4)}, {v(Gf(tau,2*part),4)}, 0")
for tau in range(2):
    for part in range(2): E(f"v_mfma_f32_16x16x32_bf16 {v(S2A+8*tau+4*part,4)}, {v(AR+4,4)}, {v(Gf(tau,2*part+1),4)}, {v(S2A+8*tau+4*part,4)}")
E("v_mov_b32 v6, 0"); E(f"buffer_load_dword v26, v6, {sB}, 0 offen sc1", tag="rdy")
E(f"s_add_u32 {sT[0]}, {sUS}, 0x100000")
for tau in range(2):
    o=S2A+16+4*tau
    for j in range(4): E(f"v_cvt_pk_bf16_f32 v{o+j}, v{S2A+8*tau+2*j}, v{S2A+8*tau+2*j+1}")
    E(f"buffer_store_dwordx4 {v(o,4)}, v7, {sW}, {sUS if tau==0 else sT[0]} offen sc1", tag="ust")
stamp("ust")
Lnr=E.newlabel()
E(f"s_cmp_ge_u32 {sJOB}, 344"); E(f"s_cbranch_scc1 {Lnr}")
st=E.save()
E.wait_vm("rp")
E(f"s_mov_b32 {sT[0]}, 0x05040100"); E(f"s_mov_b32 {sT[1]}, 0x07060302")
E(f"s_and_b32 {sT[2]}, {sJOB}, 7"); E(f"s_mul_i32 {sT[2]}, {sT[2]}, 43"); E(f"s_lshr_b32 {sT[3]}, {sJOB}, 3"); E(f"s_add_u32 {sT[2]}, {sT[2]}, {sT[3]}")
E(f"s_lshl_b32 {sT[2]}, {sT[2]}, 12"); E(f"s_add_u32 {sT[2]}, {sT[2]}, {WDOFF}")
for m in range(4):
    for j in range(4):
        E(f"v_perm_b32 v{RP+16+4*m+j}, v{RP+2*(2*j+1)+(m>>1)}, v{RP+2*(2*j)+(m>>1)}, {sT[m&1]}")
    E(f"buffer_store_dwordx4 {v(RP+16+4*m,4)}, {vL16}, {sW}, {sT[2]} offen offset:{1024*m} sc1")
E.restore(st); E.label(Lnr); E.hist=[]
E.vm.append(("ust",True))
NP2=opt("np2",8)
wq=wchunk_items(2)+wchunk_items(3)
for f in wq[:NP2]: f()
wq=wq[NP2:]
E.wait_vm("ust"); E("s_barrier")
stamp("B3")
Ls=E.newlabel(); Lr=E.newlabel(); Lr2=E.newlabel()
E(f"s_cmp_lg_u32 {sWV}, 0"); E(f"s_cbranch_scc1 {Ls}")
st=E.save()
E(f"s_mov_b32 {sT[7]}, {POLL_LIMIT}")
E.label(Lr)
E("v_cmp_ne_u32 vcc, 1, v26"); E(f"s_cbranch_vccz {Lr2}")
E(f"buffer_load_dword v26, v6, {sB}, 0 offen sc1"); E("s_waitcnt vmcnt(0)")
E(f"s_sub_u32 {sT[7]}, {sT[7]}, 1"); E(f"s_cbranch_scc0 {Lr}")
E.label(Lr2)
E(f"s_lshl_b32 {sT[0]}, {sQ}, 4"); E(f"s_and_b32 {sT[1]}, s2, 3"); E(f"s_add_u32 {sT[0]}, {sT[0]}, {sT[1]}"); E(f"s_lshl_b32 {sT[0]}, {sT[0]}, 8")
E(f"v_lshlrev_b32 v5, 10, {vL}"); E("v_mov_b32 v6, 1"); E("s_mov_b64 exec, 15")
E(f"buffer_atomic_add v6, v5, {sW}, {sT[0]} offen"); E("s_mov_b64 exec, -1")
E.restore(st); E.vm.append(("sig",True))
E.label(Ls); E.hist=[]
for f in wq: f()
E(f"v_lshrrev_b32 v5, 2, {vL}"); E("v_mul_u32_u24 v23, 192, v5"); E(f"v_and_b32 v5, 1, {vL}"); E("v_lshl_add_u32 v23, v5, 3, v23")
E(f"v_bfe_u32 v5, {vL}, 1, 1"); E(f"v_mul_u32_u24 v5, {UPO}, v5"); E(f"s_mul_i32 {sT[0]}, {sWV}, 48"); E(f"v_add3_u32 v23, v23, v5, {sT[0]}")
E("v_add_u32 v24, 0x10000, v23"); E("v_add_u32 v25, 0x20000, v23")
def Wf(k,m): return (k*3+m)*4
def trchunk(c):
    for kk in range(2):
        for m in range(3):
            for eta in range(2):
                off=CHUNK_SLOT[c]+(kk*2+eta)*3072+16*m
                E(f"ds_read_b64_tr_b16 {a(Wf(2*c+kk,m)+2*eta,2)}, v{23+(off>>16)} offset:{off&0xffff}")
trchunk(0); trchunk(1)
XR=44; XW=112
E(f"s_lshl_b32 {sT[0]}, {sWV}, 4"); E(f"v_add_u32 v8, {sT[0]}, {vI}"); E(f"v_lshl_add_u32 v5, v8, 5, {sT1}")
E(f"s_lshr_b32 {sT[0]}, {sJB}, 1"); E(f"s_lshl_b32 {sT[0]}, {sT[0]}, 7"); E(f"s_and_b32 {sT[1]}, {sJB}, 1"); E(f"s_lshl_b32 {sT[1]}, {sT[1]}, 2"); E(f"s_add_u32 {sT[0]}, {sT[0]}, {sT[1]}")
E(f"v_lshl_add_u32 v6, {vG}, 5, {sT[0]}")
E("v_lshl_add_u32 v9, v5, 10, v6")
E("v_sub_u32 v5, 0x800, v5"); E("v_and_b32 v5, 0x7ff, v5"); E("v_lshlrev_b32 v5, 10, v5"); E("v_sub_u32 v10, v5, v6"); E(f"v_add_u32 v10, {1024-28}, v10")
E("v_cmp_eq_u32 vcc, 0, v6"); E("v_mov_b32 v12, 1.0"); E("v_cndmask_b32 v12, v12, 0, vcc")
E(f"buffer_load_dwordx4 {v(XW,4)}, v9, {sX}, 0 offen", tag="xr"); E(f"buffer_load_dwordx4 {v(XW+4,4)}, v9, {sX}, 0 offen offset:16", tag="xr")
E(f"buffer_load_dwordx4 {v(XW+8,4)}, v10, {sX}, 0 offen", tag="xr"); E(f"buffer_load_dwordx4 {v(XW+12,4)}, v10, {sX}, 0 offen offset:16", tag="xr")
E(f"buffer_load_dword v{XW+16}, v5, {sX}, 0 offen offset:512", tag="xr")
wchunk(4)
F64=28
E("v_cvt_f32_u32 v7, v8"); E(f"v_cvt_f32_u32 v26, {vG}"); E(f"v_mul_f32 v7, {fbits(-1/64)}, v7"); E("v_mul_f32 v13, v7, v26"); E(f"v_mul_f32 v13, {fbits(8.0)}, v13")
for k in range(2): sincos_frag("v7","v13",[32*k+s_ for s_ in range(8)],F64+4*k,F64+8+4*k,t=100)
wchunk(5)
E(f"s_lshl_b32 {sT[0]}, {sCLS}, 6"); E(f"v_add_u32 v13, {sT[0]}, v8")
E(f"s_xor_b32 {sT[1]}, {sT[0]}, 64"); E(f"s_cmp_eq_u32 {sGA}, 0"); E(f"s_cselect_b32 {sT[1]}, {sT[0]}, {sT[1]}")
E(f"s_cmp_eq_u32 {sT1}, 0"); E(f"s_cselect_b32 {sT[2]}, 64, 63")
E(f"v_sub_u32 v14, {sT[2]}, v8"); E("v_and_b32 v14, 63, v14"); E(f"v_add_u32 v14, {sT[1]}, v14")
for (p,d) in ((13,9),(14,10)):
    E(f"v_lshrrev_b32 v5, 4, v{p}"); E(f"v_and_b32 v6, 15, v{p}"); E("v_lshlrev_b32 v5, 14, v5"); E("v_lshl_add_u32 v5, v6, 4, v5"); E(f"v_lshl_add_u32 v{d}, {vG}, 8, v5")
E(f"v_add_u32 v10, 8192, v10")
E(f"s_lshl_b32 {sT[0]}, {sGA}, 17"); E(f"s_lshl_b32 {sT[1]}, {sJB}, 10"); E(f"s_add_u32 {sHS}, {sT[0]}, {sT[1]}"); E(f"s_add_u32 {sHS}, {sHS}, {HOFF}")
E(f"v_cmp_gt_u32 vcc, 32, {vL}"); E("v_add_u32 v14, 2048, v14"); E("v_cndmask_b32 v11, v14, v13, vcc"); E("v_lshlrev_b32 v11, 2, v11")
E(f"v_and_b32 v5, 1, {vG}"); E("v_lshl_add_u32 v11, v5, 9, v11")
E(f"s_lshl_b32 {sT[0]}, {sGA}, 14"); E(f"s_add_u32 {sSS}, {sT[0]}, {sT[1]}"); E(f"s_add_u32 {sSS}, {sSS}, {STOFF}")
E(f"v_bfe_u32 v5, {vL}, 2, 2"); E(f"v_lshl_add_u32 v5, {vG}, 3, v5"); E("v_lshlrev_b32 v13, 7, v5")
E(f"v_bfe_u32 v5, {vL}, 3, 1"); E("v_lshl_add_u32 v13, v5, 6, v13"); E(f"v_and_b32 v5, 3, {vL}"); E("v_lshl_add_u32 v13, v5, 4, v13")
E(f"v_and_b32 v5, 1, {vG}"); E("v_lshl_add_u32 v13, v5, 3, v13")
E("v_xor_b32 v14, 8, v13"); E("v_xor_b32 v15, 64, v13"); E("v_xor_b32 v8, 0x48, v13")
for r_ in (13,14,15,8): E(f"v_add_u32 v{r_}, {LU}, v{r_}")
UB={(0,0):13,(0,1):14,(1,0):15,(1,1):8}
E.wait_vm("xr"); E("s_barrier")
trchunk(2); trchunk(3)
E(f"s_mov_b32 {sT[0]}, 0xffff0000")
for r in range(4):
    E(f"v_lshlrev_b32 v{XR+r}, 16, v{XW+2*r}"); E(f"v_and_b32 v{XR+4+r}, {sT[0]}, v{XW+2*r}")
E(f"v_cmp_eq_f32 vcc, 0, v12"); E(f"v_cndmask_b32 v{XW+15}, v{XW+15}, v{XW+16}, vcc")
for r in range(4):
    E(f"v_lshlrev_b32 v{XR+8+r}, 16, v{XW+8+7-2*r}"); E(f"v_and_b32 v{XR+12+r}, {sT[0]}, v{XW+8+6-2*r}")
E(f"s_lshr_b32 {sT[0]}, {sJB}, 1"); E(f"s_lshl_b32 {sT[0]}, {sT[0]}, 2"); E(f"s_and_b32 {sT[1]}, {sGA}, 3"); E(f"s_add_u32 {sT[0]}, {sT[0]}, {sT[1]}"); E(f"s_lshl_b32 {sT[0]}, {sT[0]}, 10")
E(f"v_and_b32 v6, 3, {vL}"); E(f"v_lshl_add_u32 v6, v6, 8, {sT[0]}")
E(f"s_lshl_b32 {sT[0]}, {sT1}, 3"); E(f"s_add_u32 {sT[0]}, {sT[0]}, {sJB}"); E(f"s_lshl_b32 {sT[0]}, {sT[0]}, 13"); E(f"s_lshl_b32 {sT[1]}, {sWV}, 11")
E(f"s_add_u32 {sT[0]}, {sT[0]}, {sT[1]}"); E(f"s_add_u32 {sT[0]}, {sT[0]}, {UOFF}"); E(f"s_add_u32 m0, {sT[1]}, {LU}")
E(f"s_lshl_b32 {sT[2]}, {sJ}, 2"); E(f"s_add_u32 {sT[2]}, {sT[2]}, {sWV}"); E(f"s_mul_i32 {sT[2]}, {sT[2]}, {86*128}"); E(f"s_add_u32 {sT[2]}, {sT[2]}, {WDOFF}")
E(f"v_min_u32 v26, 42, {vL}"); E(f"v_lshl_add_u32 v26, v26, 7, {sT[2]}")
E.wait_lg0()
stamp("W2")
poll("v6", sW, 16)
stamp("sync1")
E(f"buffer_load_dwordx4 {vL16}, {sW}, {sT[0]} offen sc1 lds", tag="u"); E(f"buffer_load_dwordx4 {vL16}, {sW}, {sT[0]} offen offset:1024 sc1 lds", tag="u")
if opt("wdpf",1): E(f"buffer_load_dword v27, v26, {sW}, 0 offen sc1", tag="pf")
wq=wchunk_items(6)+wchunk_items(7)
for f in wq[:7]: f()
wq=wq[7:]
E.wait_vm("u"); E("s_barrier")
stamp("uland")
UF=60; YA=92
for k in range(4):
    for eta in range(2):
        for hs in range(2):
            E(f"ds_read_b64_tr_b16 {v(UF+(k*2+eta)*4+2*hs,2)}, v{UB[(eta,k>>1)]} offset:{(32*(k&1)+4*hs)*128}", tag=f"u{k}{eta}")
for f in wq[:2]: f()
wq=wq[2:]
for k in range(4):
    for eta in range(2):
        E.wait_lg(f"u{k}{eta}")
        E(f"v_mfma_f32_16x16x32_bf16 {v(YA+4*eta,4)}, {v(UF+(k*2+eta)*4,4)}, {v(F64+4*k,4)}, {v(YA+4*eta,4) if k else '0'}")
for f in wq: f()
HP=100; SS=108
for j in range(4): E(f"v_mov_b32 v{SS+j}, 0")
for j in range(8):
    if j==0: E(f"v_fmac_f32 v{XR}, v{YA}, v12")
    else: E(f"v_add_f32 v{XR+j}, v{XR+j}, v{YA+j}")
for j in range(4): E(f"v_cvt_pk_bf16_f32 v{HP+j}, v{XR+2*j}, v{XR+2*j+1}")
E(f"buffer_store_dwordx4 {v(HP,4)}, v9, {sW}, {sHS} offen sc1")
for j in range(8): E(f"v_add_f32 v{XR+8+j}, v{XR+8+j}, v{YA+j}")
for j in range(4): E(f"v_cvt_pk_bf16_f32 v{HP+4+j}, v{XR+8+2*j}, v{XR+8+2*j+1}")
E(f"buffer_store_dwordx4 {v(HP+4,4)}, v10, {sW}, {sHS} offen sc1")
for j in range(4):
    for h in range(2):
        E(f"v_dot2c_f32_bf16 v{SS+2*h}, {sONE}, v{HP+4*h+j}"); E(f"v_dot2c_f32_bf16 v{SS+2*h+1}, v{HP+4*h+j}, v{HP+4*h+j}")
E(f"v_permlane32_swap_b32 v{SS}, v{SS+2}"); E(f"v_permlane32_swap_b32 v{SS+1}, v{SS+3}")
E(f"v_add_f32 v{SS}, v{SS}, v{SS+2}"); E(f"v_add_f32 v{SS+1}, v{SS+1}, v{SS+3}")
E(f"v_permlane16_swap_b32 v{SS}, v{SS+1}"); E(f"v_add_f32 v{SS}, v{SS}, v{SS+1}")
E(f"buffer_store_dword v{SS}, v11, {sW}, {sSS} offen sc1")
stamp("hst")
trchunk(4); trchunk(5)
E(f"s_lshl_b32 {sT[0]}, {sGA}, 8"); E(f"s_add_u32 {sT[0]}, {sT[0]}, {64*CSTR}"); E(f"v_mov_b32 v6, {sT[0]}")
E.wait_vm0(); E("s_barrier")
signal("v6")
stamp("sig2")
trchunk(6); trchunk(7)
E(f"s_lshl_b32 {sT[0]}, {sG3}, 17"); E(f"s_lshl_b32 {sW4}, {sWV}, 12"); E(f"s_add_u32 {sHB}, {sT[0]}, {sW4}"); E(f"s_add_u32 {sHB}, {sHB}, {HOFF}")
E(f"s_lshl_b32 {sT[0]}, {sG3}, 14"); E(f"s_add_u32 {sSB}, {sT[0]}, {sW4}"); E(f"s_add_u32 {sSB}, {sSB}, {STOFF}")
E(f"v_lshrrev_b32 v5, 1, {vG}"); E(f"v_mul_u32_u24 v5, {ACT_T}, v5"); E(f"v_lshl_add_u32 v5, {vI}, 4, v5"); E(f"v_and_b32 v10, 1, {vG}")
E("v_lshl_add_u32 v8, v10, 3, v5"); E("v_lshl_add_u32 v9, v10, 8, v5"); E("v_add_u32 v9, 256, v9")
E(f"s_mul_i32 {sT[0]}, {sG3}, {ACT_G}"); E(f"s_lshl_b32 {sT[1]}, {sCB}, 2"); E(f"s_add_u32 {sT[1]}, {sT[1]}, {sWV}"); E(f"s_mul_i32 {sT[1]}, {sT[1]}, 768")
E(f"s_add_u32 {sAS}, {sT[0]}, {sT[1]}"); E(f"s_add_u32 {sAS}, {sAS}, {ACTOFF}")
E(f"v_lshrrev_b32 v5, 1, {vG}"); E(f"v_lshl_add_u32 v5, v5, 4, {vI}"); E("v_lshlrev_b32 v5, 3, v5"); E(f"v_add_u32 v10, {LST}, v5")
E("v_lshlrev_b32 v11, 4, v0"); E(f"v_add_u32 v11, {LSP}, v11"); E("v_and_b32 v7, 127, v0"); E("v_lshlrev_b32 v7, 2, v7")
E(f"s_mul_i32 {sT[0]}, {sJB}, 43"); E(f"s_mul_i32 {sT[1]}, {sWV}, 11"); E(f"s_add_u32 {sT[0]}, {sT[0]}, {sT[1]}"); E(f"s_lshl_b32 {sT[0]}, {sT[0]}, 12"); E(f"s_add_u32 {sWDS}, {sT[0]}, {WDOFF}")
E(f"s_lshl_b32 {sT[0]}, {sG3}, 8"); E(f"s_add_u32 {sT[0]}, {sT[0]}, {64*CSTR}"); E(f"v_mov_b32 v6, {sT[0]}")
HBV=[12,13,14,15]
for p in range(4): E(f"v_add_u32 v{HBV[p]}, {32768*p}, {vL16}")
CS=28
for j in range(4): E(f"v_mov_b32 v{60+j}, {sONE}")
E.wait_lg0()
stamp("W4")
poll("v6", sW, 16)
stamp("sync2")
def hdma_items(t):
    items=[]
    for k in range(4):
        def f(k=k):
            if k==0: E(f"s_add_u32 m0, {sW4}, {t*16384}"); E(f"s_add_u32 {sT[0]}, {sHB}, {t*16384}")
            E(f"buffer_load_dwordx4 {vL16}, {sW}, {sT[0]} offen offset:{1024*k} sc1 lds", tag=f"h{t>>1}")
        items.append(f)
    return items
STL=144
vq=[]
for f in hdma_items(0)+hdma_items(1): f()
for k in range(4): vq.append(lambda k=k: E(f"buffer_load_dwordx4 {v(STL+4*k,4)}, {vL16}, {sW}, {sSB} offen offset:{1024*k} sc1", tag="st"))
vq+=hdma_items(2)+hdma_items(3)
if opt("wdpf",1): vq.append(lambda: (E(f"v_add_u32 v26, {43*128}, v26"), E(f"buffer_load_dword v27, v26, {sW}, 0 offen sc1", tag="pf")))
for t in range(4,8): vq+=hdma_items(t)
def WDf(n): return a(192+4*n,4) if n<16 else v(144+4*(n-16),4)
for n in range(44):
    def f(n=n):
        if n%4==0: E(f"s_add_u32 {sT[2]}, {sWDS}, {(n//4)*4096}")
        E(f"buffer_load_dwordx4 {WDf(n)}, {vL16}, {sW}, {sT[2]} offen offset:{1024*(n&3)} sc1", tag="wd")
    if not opt("nowd",0): vq.append(f)
vq.pop(0)(); vq.pop(0)()
if opt("hfirst",0):
    while vq: vq.pop(0)()
    E.wait_vm0()
for k in range(16):
    for m in range(3):
        E(f"v_mfma_f32_16x16x32_bf16 {v(CS+4*m,4)}, {a(Wf(k,m),4)}, {v(60,4)}, {v(CS+4*m,4) if k else '0'}")
A3=52; BR=100; NB=8; T3=132
def acc3(p,tt,m): return A3+24*((p+1)&1)+12*tt+4*m
E.wait_vm("h0"); E("s_barrier")
stamp("h0")
fr3=[(p,k,tt) for p in range(4) for k in range(16) for tt in range(2)]
def rd3(n):
    p,k,tt=fr3[n]
    E(f"ds_read_b128 {v(BR+4*(n%NB),4)}, v{HBV[p]} offset:{tt*16384+k*1024}", tag=f"b{n}")
PD=5
for n in range(PD): rd3(n)
LOG2E=1.4426950408889634
def epilogue(p):
    vM,vK=T3,T3+1
    Q(f"ds_read_b64 {v(vM,2)}, v10 offset:{256*p}", tag="es")
    for m in range(3):
        for r in range(4): Q(f"v_permlane32_swap_b32 v{acc3(p,0,m)+r}, v{acc3(p,1,m)+r}")
    QF(lambda: E.wait_lg("es"))
    els=[(m,r) for m in range(3) for r in range(4)]
    for (m,r) in els[:2]: Q(f"v_fmac_f32 v{acc3(p,0,m)+r}, v{vM}, v{CS+4*m+r}")
    PK=T3+6
    def pk(m,j): return PK+4+j if m==0 else PK+2*(m-1)+j
    for gi in range(6):
        e2=els[2*gi:2*gi+2]; t=[T3+2+2*(gi&1),T3+3+2*(gi&1)]
        for x,(m,r) in enumerate(e2): Q(f"v_mul_f32 v{t[x]}, v{acc3(p,0,m)+r}, v{vK}")
        for x,(m,r) in enumerate(e2):
            Q(f"v_exp_f32 v{t[x]}, v{t[x]}"); Q(f"v_fmac_f32 v{acc3(p,1,m)+r}, v{vM}, v{CS+12+4*m+r}")
        for x,(m,r) in enumerate(e2): Q(f"v_add_f32 v{t[x]}, 1.0, v{t[x]}")
        for x,(m,r) in enumerate(e2):
            Q(f"v_rcp_f32 v{t[x]}, v{t[x]}"); Q(f"v_mul_f32 v{acc3(p,1,m)+r}, v{acc3(p,1,m)+r}, v{acc3(p,0,m)+r}")
        for (m,r) in els[2*gi+2:2*gi+4]: Q(f"v_fmac_f32 v{acc3(p,0,m)+r}, v{vM}, v{CS+4*m+r}")
        for x,(m,r) in enumerate(e2): Q(f"v_mul_f32 v{t[x]}, v{t[x]}, v{acc3(p,1,m)+r}")
        m=e2[0][0]; Q(f"v_cvt_pk_bf16_f32 v{pk(m,gi&1)}, v{t[0]}, v{t[1]}")
        if gi==1:
            Q(f"s_add_u32 {sT[1]}, {sAS}, {2*p*ACT_T}")
            Q(f"buffer_store_dwordx2 {v(PK+4,2)}, v8, {sW}, {sT[1]} offen sc1", tag="ast")
    Q(f"buffer_store_dwordx4 {v(PK,4)}, v9, {sW}, {sT[1]} offen sc1", tag="ast")
def stats_stage():
    for j in range(12): Q(f"v_mov_b32 v{CS+12+j}, v{CS+j}")
    for j in range(12): Q(f"v_permlane32_swap_b32 v{CS+j}, v{CS+12+j}")
    skipq(10)
    QF(lambda: E.wait_vm("st"))
    for j in range(8): Q(f"v_add_f32 v{STL+j}, v{STL+j}, v{STL+8+j}")
    for j in range(4): Q(f"v_add_f32 v{STL+j}, v{STL+j}, v{STL+4+j}")
    Q(f"ds_write_b128 v11, {v(STL,4)}", tag="spw")
    Q(f"v_add_u32 v5, {LSP}, v7")
    skipq(6)
    def bar(): E.wait_lg("spw"); E("s_barrier")
    QF(bar)
    for j in range(4):
        Q(f"ds_read_b32 v{STL+4+2*j}, v5 offset:{1024*j}", tag="spr"); Q(f"ds_read_b32 v{STL+5+2*j}, v5 offset:{1024*j+512}", tag="spr")
    Q(f"v_lshlrev_b32 v5, 1, v7"); Q(f"v_add_u32 v5, {LST}, v5")
    skipq(8)
    QF(lambda: E.wait_lg("spr"))
    S=STL+4
    for j in range(4): Q(f"v_add_f32 v{S+j}, v{S+j}, v{S+4+j}")
    for j in range(2): Q(f"v_add_f32 v{S+j}, v{S+j}, v{S+2+j}")
    Q(f"v_mul_f32 v{S}, {fbits(-1/512)}, v{S}"); Q(f"v_mov_b32 v{S+2}, {fbits(1e-5)}")
    Q(f"v_fmamk_f32 v{S+1}, v{S+1}, {fbits(1/512)}, v{S+2}"); Q(f"v_fma_f32 v{S+1}, -v{S}, v{S}, v{S+1}"); Q(f"v_max_f32 v{S+1}, v{S+1}, v{S+2}")
    Q(f"v_rcp_f32 v{S+2}, v{S+1}"); Q(f"v_rsq_f32 v{S+1}, v{S+1}"); skipq(1)
    Q(f"v_mul_f32 v{S+1}, {fbits(-LOG2E)}, v{S+1}")
    Q(f"ds_write_b64 v5, {v(S,2)}", tag="stw")
    def rs():
        L=E.newlabel()
        E(f"s_cmp_lg_u32 {sCB}, 0"); E(f"s_cbranch_scc1 {L}")
        E(f"s_lshl_b32 {sT[1]}, {sG3}, 9"); E(f"s_add_u32 {sT[1]}, {sT[1]}, {RSOFF}")
        E(f"buffer_store_dword v{S+2}, v7, {sW}, {sT[1]} offen sc1", tag="rs", optional=True)
        E.label(L)
    QF(rs)
VSTEP=opt("vstep",5); nm=0
for n in range(128):
    p,k,tt=fr3[n]
    if k==0 and tt==0:
        assert not fill, len(fill)
        if p==0: stats_stage()
        elif not opt("noepi",0): skipq(6); epilogue(p-1)
    E.wait_lg(f"b{n}")
    for m in range(3):
        d=acc3(p,tt,m)
        E(f"v_mfma_f32_16x16x32_bf16 {v(d,4)}, {a(Wf(k,m),4)}, {v(BR+4*(n%NB),4)}, {v(d,4) if k else '0'}")
        nm+=1
        if nm%VSTEP==0 and vq: vq.pop(0)(); pop(1 if m<2 else 0)
        else: pop(2 if m<2 else 1)
    nn=n+PD
    if nn<128:
        if fr3[nn][1:]==(0,0):
            if fr3[nn][0]==1: drain()
            E.wait_lg("stw"); E.wait_vm(f"h{fr3[nn][0]}"); E("s_barrier")
        rd3(nn)
    if (k,tt)==(15,1): drain()
stamp("p3mfma")
epilogue(3); drain()
print("leftover vq", len(vq))
E(f"s_lshl_b32 {sT[0]}, {sG3}, 8"); E(f"s_add_u32 {sT[0]}, {sT[0]}, {80*CSTR}"); E(f"v_mov_b32 v6, {sT[0]}")
stamp("p3end")
while vq: vq.pop(0)()
E.wait_vm("ast"); E("s_barrier")
signal("v6")
stamp("sig3")
HR=12; HW=92
sOT=sHS
E(f"s_add_u32 {sOT}, {sWV}, {sJB}"); E(f"s_and_b32 {sOT}, {sOT}, 3")
E(f"s_lshl_b32 {sT[0]}, {sCLS}, 2"); E(f"s_add_u32 {sT[0]}, {sT[0]}, {sOT}"); E(f"s_lshl_b32 {sT[1]}, {sGA}, 17"); E(f"s_lshl_b32 {sT[2]}, {sT[0]}, 14"); E(f"s_add_u32 {sT[1]}, {sT[1]}, {sT[2]}")
E(f"s_cmp_ge_u32 {sJB}, 4"); E(f"s_cselect_b32 {sT[3]}, 31, 0"); E(f"s_cselect_b32 {sT[4]}, 8192, 0"); E(f"s_add_u32 {sSS}, {sT[1]}, {sT[4]}"); E(f"s_add_u32 {sSS}, {sSS}, {HOFF}")
E(f"s_lshl_b32 {sT[2]}, {sJB}, 2"); E(f"v_add_u32 v5, {sT[2]}, {vG}"); E(f"v_xor_b32 v8, {sT[3]}, v5")
for (src,dst) in ((8,7),(9,11)):
    if src==9: E("v_add_u32 v9, 1, v8"); E("v_and_b32 v9, 15, v9")
    E(f"v_lshrrev_b32 v{dst}, 2, v{src}"); E(f"v_lshlrev_b32 v{dst}, 11, v{dst}"); E(f"v_and_b32 v10, 3, v{src}"); E(f"v_lshl_add_u32 v{dst}, v10, 8, v{dst}"); E(f"v_lshl_add_u32 v{dst}, {vI}, 4, v{dst}")
E(f"s_lshl_b32 {sT[1]}, {sGA}, 9"); E(f"s_lshl_b32 {sT[0]}, {sT[0]}, 6"); E(f"s_add_u32 {sSB}, {sT[0]}, {sT[1]}"); E(f"s_add_u32 {sSB}, {sSB}, {RSOFF}"); E(f"v_lshlrev_b32 v139, 2, {vI}")
E(f"s_lshl_b32 {sT[0]}, {sOT}, 4"); E(f"v_add_u32 v10, {sT[0]}, {vI}"); E(f"v_lshl_add_u32 v10, v10, 5, {sT1}"); E("v_lshlrev_b32 v10, 10, v10"); E("v_lshl_add_u32 v10, v5, 5, v10")
E(f"s_mul_i32 {sT[0]}, {sGA}, {ACT_G}"); E(f"s_mul_i32 {sT[1]}, {sCLS}, {4*ACT_T}"); E(f"s_add_u32 {sT[0]}, {sT[0]}, {sT[1]}"); E(f"s_mul_i32 {sT[1]}, {sWV}, {11*1024}")
E(f"s_add_u32 {sT[0]}, {sT[0]}, {sT[1]}"); E(f"s_add_u32 {sT[0]}, {sT[0]}, {ACTOFF}")
order=[1,2,3,0]
for x,n_ in enumerate(order):
    E(f"s_add_u32 {sT[1]}, {sOT}, {n_}"); E(f"s_and_b32 {sT[1]}, {sT[1]}, 3")
    if n_:
        E(f"s_mul_i32 {sT[6]}, {sT[1]}, 12288"); E(f"s_add_u32 {sT[6]}, {sT[6]}, {(n_-1)*4096}"); E(f"v_add_u32 v{139+n_}, {sT[6]}, {vL16}")
    E(f"s_mul_i32 {sT[1]}, {sT[1]}, {ACT_T}"); E(f"s_add_u32 {sT[2+x]}, {sT[0]}, {sT[1]}")
E(f"s_mul_i32 {sT[6]}, {sOT}, 12288"); E(f"v_add_u32 v143, {sT[6]}, {vL16}")
E(f"v_add_u32 v8, 4096, {vL16}"); E(f"v_add_u32 v9, 8192, {vL16}")
E(f"s_lshl_b32 {sT[0]}, {sGA}, 8"); E(f"s_add_u32 {sT[0]}, {sT[0]}, {80*CSTR}"); E(f"v_mov_b32 v6, {sT[0]}")
stamp("W6")
poll("v6", sW, 16)
stamp("sync3")
aq=[]
for x in range(4):
    for kk in range(11):
        aq.append(lambda x=x,kk=kk: E(f"buffer_load_dwordx4 {a((x*11+kk)*4,4)}, {[vL16,'v8','v9'][kk>>2]}, {sW}, {sT[2+x]} offen offset:{1024*(kk&3)} sc1", tag=f"a{x}_{kk}"))
    if x==0:
        aq.append(lambda: (E(f"buffer_load_dwordx4 {v(HW,4)}, v7, {sW}, {sSS} offen sc1", tag="hr"), E(f"buffer_load_dwordx4 {v(HW+4,4)}, v7, {sW}, {sSS} offen offset:1024 sc1", tag="hr")))
        aq.append(lambda: (E(f"buffer_load_dword v{HW+8}, v11, {sW}, {sSS} offen sc1", tag="hr"), E(f"buffer_load_dword v11, v139, {sW}, {sSB} offen sc1", tag="hr")))
AD=opt("ad",10)
for _ in range(AD): aq.pop(0)()
A4=28; PR=92
def unpack_hres():
    E.wait_vm("hr")
    L1=E.newlabel(); L2=E.newlabel()
    E(f"s_mov_b32 {sT[6]}, 0xffff0000")
    E(f"s_cmp_ge_u32 {sJB}, 4"); E(f"s_cbranch_scc1 {L1}")
    def put(j,el):
        r,b,eta=el>>2,(el>>1)&1,el&1; sg=4*eta+r; src=HW+4*b+(sg>>1)
        if sg&1: E(f"v_and_b32 v{HR+j}, {sT[6]}, v{src}")
        else: E(f"v_lshlrev_b32 v{HR+j}, 16, v{src}")
    for j in range(16): put(j,j)
    E(f"s_branch {L2}"); E.label(L1)
    E(f"v_lshlrev_b32 v{HR}, 16, v{HW+8}")
    for j in range(1,16): put(j,16-j)
    E.label(L2)
for x in range(4):
    for kk in range(11):
        E.wait_vm(f"a{x}_{kk}")
        if aq: aq.pop(0)()
        if kk==10:
            drain()
            Lk=E.newlabel(); E(f"s_cmp_eq_u32 {sWV}, 3"); E(f"s_cbranch_scc1 {Lk}")
        for m in range(4):
            d=A4+16*x+4*m
            E(f"v_mfma_f32_16x16x32_bf16 {v(d,4)}, {WDf(kk*4+m)}, {a((x*11+kk)*4,4)}, {v(d,4) if kk else '0'}")
            if kk<10: pop(1)
        if kk==10: E.label(Lk)
    if x<3:
        skipq(8)
        for m in range(4): Q(f"ds_write_b128 v{140+x}, {v(A4+16*x+4*m,4)} offset:{1024*m}", tag="pw")
    if x==0: QF(unpack_hres)
    if x==2:
        skipq(6)
        def bar(): E.wait_lg0(); E("s_barrier")
        QF(bar)
        for j in range(12): Q(f"ds_read_b128 {v(PR+4*j,4)}, v143 offset:{1024*j}", tag="pr")
stamp("p4mfma")
E.wait_lg0()
for j in range(16): E(f"v_add_f32 v{PR+j}, v{PR+j}, v{PR+16+j}")
for j in range(16): E(f"v_add_f32 v{PR+j}, v{PR+j}, v{PR+32+j}")
for j in range(16): E(f"v_add_f32 v{PR+j}, v{PR+j}, v{A4+48+j}")
for j in range(16):
    r,m=j>>2,j&3
    E(f"v_fmac_f32 v{HR+j}, v{PR+4*m+r}, v11")
for j in range(8): E(f"v_cvt_pk_bf16_f32 v{A4+j}, v{HR+2*j}, v{HR+2*j+1}")
E(f"buffer_store_dwordx4 {v(A4,4)}, v10, {sO}, 0 offen"); E(f"buffer_store_dwordx4 {v(A4+4,4)}, v10, {sO}, 0 offen offset:16")
if STAMPS:
    E.wait_vm0(); stamp("end")
    ns=nst[0]
    E(f"s_cmp_lg_u32 {sWV}, 0"); E("s_cbranch_scc1 Lend")
    if "probe" in OPT:
        i,j,K=[int(x) for x in OPT["probe"].split(",")]
        R=lambda i: 98 if i==0 else (5+i if i<23 else 56+i-23)
        E(f"s_sub_u32 {sT[0]}, s{R(j)}, s{R(i)}"); E(f"s_mul_i32 {sT[0]}, {sT[0]}, {K}"); E(f"s_min_u32 {sT[0]}, {sT[0]}, 100000")
        E.label("Lspin"); E("s_memrealtime s[100:101]"); E("s_waitcnt lgkmcnt(0)"); E(f"s_sub_u32 {sT[1]}, s100, s{R(ns-1)}"); E(f"s_cmp_lt_u32 {sT[1]}, {sT[0]}"); E("s_cbranch_scc1 Lspin")
    E(f"s_mul_i32 {sT[0]}, s2, {ns*8}"); E(f"s_add_u32 {sT[0]}, {sT[0]}, {STAMPOFF}"); E("v_mov_b32 v5, 0"); E("s_mov_b64 exec, 1")
    for i in range(ns):
        r=98 if i==0 else (5+i if i<23 else 56+i-23)
        E(f"v_mov_b32 v6, s{r}"); E(f"v_mov_b32 v7, 0"); E(f"buffer_store_dwordx2 v[6:7], v5, {sW}, {sT[0]} offen offset:{8*i}")
    print("nstamps",ns, " ".join(snames))
E.label("Lend"); E("s_endpgm")

hdr=open("cdna_kernels/"+NAME+".s.ref").read().split("; Override")[0]
txt=hdr+f"; @launch grid=(256,1,1) block=(256,1,1) lds={LDS_TOTAL}\n"
txt+=f""".amdgcn_target "amdgcn-amd-amdhsa--gfx950"
.text
.globl {NAME}_kernel
.p2align 8
.type {NAME}_kernel,@function
{NAME}_kernel:
"""+E.text()+f""".section .rodata,"a"
.p2align 6
.amdhsa_kernel {NAME}_kernel
  .amdhsa_next_free_vgpr 512
  .amdhsa_next_free_sgpr 102
  .amdhsa_accum_offset 256
  .amdhsa_group_segment_fixed_size 0
  .amdhsa_kernarg_size 96
  .amdhsa_user_sgpr_count 2
  .amdhsa_user_sgpr_kernarg_segment_ptr 1
  .amdhsa_system_sgpr_workgroup_id_x 1
.end_amdhsa_kernel
"""
open(OUT,"w").write(txt)
print("lines",len(E.lines),"nops",E.nnops)
```
